```python
import torch

def _softmax(x, axis=-1):
    return torch.softmax(x, dim=axis)
def _gelu(x):
    return torch.nn.functional.gelu(x, approximate="tanh")
def _silu(x):
    return torch.nn.functional.silu(x)
def _sigmoid(x):
    return torch.sigmoid(x)
def _layernorm(x, axis=-1, eps=1e-5):
    m = x.mean(dim=axis, keepdim=True)
    v = x.var(dim=axis, keepdim=True, unbiased=False)
    return (x - m) / torch.sqrt(v + eps)
def _scatter_add(tgt, idx, src, axis=0):
    return tgt.clone().index_add_(axis, idx, src)
def _segment_sum(src, seg, n):
    out = torch.zeros((n,) + src.shape[1:], dtype=src.dtype)
    return out.index_add_(0, seg, src)
def _pad(x, pw):
    flat = tuple(v for pair in reversed(pw) for v in pair)
    return torch.nn.functional.pad(x, flat)

kernel_name = 'gated_mix__mha_block_cached__swiglu_ffn__decode'

def setup_inputs():

    _w = (lambda a: (lambda t: t.to(torch.bfloat16) if t.is_floating_point() else t)(torch.as_tensor(a)))
    def _A_setup():
        B, Sq, D = 8, 1, 448
        H, Sk, Dh = 16, 4096, 256
        return {
            "x": _w((lambda *s: torch.randn(*s, dtype=torch.bfloat16) * 0.05)(B, Sq, D)),
            "k_cache": _w((lambda *s: torch.randn(*s, dtype=torch.bfloat16) * 6.4)(B, H, Sk, Dh)),
            "v_cache": _w((lambda *s: torch.randn(*s, dtype=torch.bfloat16) * 0.2)(B, H, Sk, Dh)),
            "wq": _w((lambda *s: torch.randn(*s, dtype=torch.bfloat16) * 6.4)(D, H * Dh) * (D ** -0.5)),
            "wo": _w((lambda *s: torch.randn(*s, dtype=torch.bfloat16) * 0.2)(H * Dh, D) * ((H * Dh) ** -0.5)),
        }
    _A_in = _A_setup()

    def _B_setup():
        B, S, D, F = 8, 1, 448, 1792
        return {
            "x": _w((lambda *s: torch.randn(*s, dtype=torch.bfloat16) * 0.05)(B, S, D)),
            "w_gate": _w((lambda *s: torch.randn(*s, dtype=torch.bfloat16) * 0.05)(D, F)),
            "w_up": _w((lambda *s: torch.randn(*s, dtype=torch.bfloat16) * 0.05)(D, F)),
            "w_down": _w((lambda *s: torch.randn(*s, dtype=torch.bfloat16) * 0.05)(F, D)),
        }
    _B_in = _B_setup()

    return {
        "A_x": _A_in["x"],
        "A_k_cache": _A_in["k_cache"],
        "A_v_cache": _A_in["v_cache"],
        "A_wq": _A_in["wq"],
        "A_wo": _A_in["wo"],
        "B_x": _B_in["x"],
        "B_w_gate": _B_in["w_gate"],
        "B_w_up": _B_in["w_up"],
        "B_w_down": _B_in["w_down"],
        "gate_w": _w((lambda *s: torch.randn(*s, dtype=torch.bfloat16) * 0.05)(448) * 16.0),
    }

def reference(A_x, A_k_cache, A_v_cache, A_wq, A_wo, B_x, B_w_gate, B_w_up, B_w_down, gate_w):
    def _A_ref(x, k_cache, v_cache, wq, wo):
        B, Sq, D = x.shape
        H, Dh = 16, 256
        q = (lambda x, *d: x.permute(*d))((x @ wq).reshape(B, Sq, H, Dh), 0, 2, 1, 3)
        scores = torch.einsum("bhqd,bhkd->bhqk", q, k_cache) * (Dh ** -0.5)
        p = _softmax(scores, axis=-1)
        o = torch.einsum("bhqk,bhkd->bhqd", p, v_cache)
        return (lambda x, *d: x.permute(*d))(o, 0, 2, 1, 3).reshape(B, Sq, H * Dh) @ wo

    def _B_ref(x, w_gate, w_up, w_down):
        g = _silu(x @ w_gate)
        u = x @ w_up
        return (g * u) @ w_down

    x = A_x
    g = _sigmoid((x * gate_w).sum(-1, keepdims=True))
    a = _A_ref(x, A_k_cache, A_v_cache, A_wq, A_wo)
    b = _B_ref(x, B_w_gate, B_w_up, B_w_down)
    return g * a + (1 - g) * b
```

```python
def h2(A, jm):
    import numpy as np
    cw = [int(w) for w in np.where((jm >= 112) & (jm < 168))[0]]
    pick = []
    for x in range(8):
        c = [w for w in cw if (w & 7) == x and w not in pick]
        if c: pick.append(c[len(c)//2])
    for w in cw:
        if len(pick) < 8 and w not in pick: pick.append(w)
    A("  s_mov_b32 s30, -1")
    for k, w in enumerate(pick):
        A(f"  s_cmp_eq_u32 s2, {w}")
        A(f"  s_cselect_b32 s30, {4*k}, s30")
    A("  s_cmp_lt_i32 s30, 0")
    A("  s_cbranch_scc1 L_end")
    A("  v_mov_b32 v0, s30")
    A("  s_cmp_eq_u32 s100, 1")
    A("  s_cbranch_scc1 L_h2j")
    A("  s_cmp_lg_u32 s100, 2")
    A("  s_cbranch_scc1 L_end")
    A("  v_sub_u32 v6, v6, v2")
    A("  v_sub_u32 v5, v5, v2")
    A("  v_mul_u32_u24 v5, 10000, v5")
    A("  v_add_u32 v6, v5, v6")
    A("  global_store_dword v0, v6, s[26:27] offset:32")
    A("  s_endpgm")
    A("L_h2j:")
    A("  v_sub_u32 v10, v10, v2")
    A("  v_sub_u32 v3, v3, v2")
    A("  v_mul_u32_u24 v3, 10000, v3")
    A("  v_add_u32 v6, v3, v10")
    A("  global_store_dword v0, v6, s[26:27]")
    A("  s_endpgm")
```

```python
import re, sys

TRANS = ("v_exp_", "v_log_", "v_rcp_", "v_rsq_", "v_sqrt_", "v_sin_", "v_cos_")

def regs(tok):
    tok = tok.strip().lstrip('-').strip('|')
    m = re.fullmatch(r'([vsa])(\d+)', tok)
    if m: return {(m.group(1), int(m.group(2)))}
    m = re.fullmatch(r'([vsa])\[(\d+):(\d+)\]', tok)
    if m: return {(m.group(1), i) for i in range(int(m.group(2)), int(m.group(3)) + 1)}
    if tok == 'vcc': return {('s', 106), ('s', 107)}
    if tok == 'exec': return {('s', 126), ('s', 127)}
    if tok == 'm0': return {('s', 124)}
    return set()

class I:
    def __init__(self, text, ln):
        self.text = text; self.ln = ln
        parts = text.split(None, 1)
        self.op = op = parts[0]
        rest = parts[1] if len(parts) > 1 else ''
        ops = [o.strip() for o in re.split(r',(?![^\[]*\])', rest)] if rest else []
        mods = ''
        if ops:
            sp = ops[-1].split(None, 1)
            ops[-1] = sp[0]
            mods = sp[1] if len(sp) > 1 else ''
        self.ops = ops; self.mods = mods
        self.mfma = op.startswith(('v_mfma','v_smfmac'))
        self.valu = op.startswith('v_') and not self.mfma
        self.dot = op.startswith('v_dot')
        self.trans = op.startswith(TRANS)
        self.dpp = '_dpp' in op or 'row_' in mods or 'quad_perm' in mods
        self.rdlane = op.startswith(('v_readlane', 'v_readfirstlane'))
        self.wrlane = op.startswith('v_writelane')
        self.perm = op.startswith('v_permlane')
        self.vmem = op.startswith(('buffer_', 'global_', 'flat_'))
        self.ds = op.startswith('ds_')
        self.salu = op.startswith('s_')
        self.ws = 1
        if op == 's_nop': self.ws = int(ops[0], 0) + 1
        R = [regs(o) for o in ops]
        self.w = set(); self.r = set(); self.srcc = set(); self.ab = set(); self.data = set()
        if self.mfma and op.startswith('v_smfmac'):
            self.w = R[0]; self.ab = R[1] | R[2] | R[3]; self.srcc = R[0]; self.r = self.ab | self.srcc
        elif self.mfma:
            self.w = R[0]; self.ab = R[1] | R[2]; self.srcc = R[3]; self.r = self.ab | self.srcc
        elif self.valu:
            self.w = set(R[0]); self.r = set().union(*R[1:]) if len(R) > 1 else set()
            if op.startswith(('v_dot2c', 'v_fmac', 'v_mac', 'v_pk_fmac')): self.r |= R[0]
            if self.perm: self.w |= R[1]; self.r |= R[0]
            if op.startswith('v_cmpx'): self.w |= regs('exec')
            if op.startswith(('v_cndmask_b32_e32',)) or (op == 'v_cndmask_b32' and len(ops) == 3): self.r |= regs('vcc')
            if '_co_' in op: self.w |= R[1]
            if self.wrlane: self.r |= R[0]
        elif self.vmem:
            if 'store' in op:
                self.r = set().union(*R); self.data = R[0] if op.startswith('buffer') else R[1]
            elif 'atomic' in op:
                self.r = set().union(*R)
                if 'sc0' in mods: self.w = R[0]
            elif op.startswith(('buffer_inv', 'buffer_wbl2')): pass
            else:
                self.w = R[0]; self.r = set().union(*R[1:])
        elif self.ds:
            if 'read' in op or 'rtn' in op or 'permute' in op or 'swizzle' in op:
                self.w = R[0]; self.r = set().union(*R[1:])
            else:
                self.r = set().union(*R)
        elif self.salu:
            if op.startswith(('s_cmp', 's_cbranch', 's_branch', 's_waitcnt', 's_nop', 's_barrier', 's_endpgm', 's_sleep', 's_setprio', 's_bitcmp')):
                self.r = set().union(*R) if R else set()
            else:
                self.w = R[0] if R else set(); self.r = set().union(*R[1:]) if len(R) > 1 else set()
                if 'saveexec' in op: self.w |= regs('exec')

def need(p, c):
    n = 0
    V = lambda s: {x for x in s if x[0] in 'va'}
    S = lambda s: {x for x in s if x[0] == 's'}
    if p.valu:
        pv = V(p.w); ps = S(p.w)
        if c.dpp and c.valu and len(c.ops) > 1 and pv & regs(c.ops[1]): n = max(n, 2)
        if c.mfma and pv & c.r: n = max(n, 3 if p.dot else 2)
        if c.rdlane and pv & c.r: n = max(n, 1)
        if c.perm and pv & c.r: n = max(n, 2)
        if p.trans and (c.valu or c.mfma) and pv & c.r: n = max(n, 1)
        if p.trans and (c.vmem or c.ds) and pv & c.r: n = max(n, 1)
        if p.dot:
            if c.op == p.op:
                cc = regs(c.ops[0]) if p.op.startswith('v_dot2c') else regs(c.ops[3])
                other = set().union(*[regs(o) for o in c.ops[1:3]])
                if pv & other: n = max(n, 3)
            elif pv & (c.r | c.w): n = max(n, 3)
        if ps:
            if c.valu and ps & c.r: n = max(n, 4 if (c.rdlane or c.wrlane) else 2)
            if c.vmem and ps & c.r: n = max(n, 5)
            if ps & regs('exec'):
                if c.dpp: n = max(n, 5)
                if c.rdlane or c.wrlane or c.perm or c.mfma: n = max(n, 4)
    if p.mfma:
        if c.mfma:
            if p.w & c.ab: n = max(n, 8)
            if p.w & c.srcc and not (p.w == c.srcc and p.op == c.op): n = max(n, 6)
            if p.w & c.w and not (p.w == c.srcc and p.op == c.op): n = max(n, 8)
        elif (c.valu or c.vmem or c.ds) and p.w & (c.r | c.w): n = max(n, 8)
        if c.valu and p.srcc & c.w: n = max(n, 3)
    if p.vmem and len(p.data) >= 3 and (c.w & p.data): n = max(n, 2)
    if p.salu and ('s', 124) in p.w and c.vmem and 'lds' in c.mods: n = max(n, 1)
    return n

def check_seq(seq, errs, start=0):
    for ci in range(start, len(seq)):
        c = seq[ci]; d = 0
        for pi in range(ci - 1, max(-1, ci - 14), -1):
            p = seq[pi]
            nd = need(p, c)
            if nd > d:
                errs.add((p.ln, c.ln, nd, d, p.text, c.text))
            d += p.ws
            if d >= 10: break

def lint(text):
    ins = []; labels = {}
    for ln, line in enumerate(text.split('\n'), 1):
        line = line.split(';')[0].strip()
        if not line or line.startswith('.'):
            if line.startswith('.section'): break
            continue
        if line.endswith(':'):
            labels[line[:-1]] = len(ins); continue
        ins.append(I(line, ln))
    errs = set()
    seg = []
    for i in ins:
        seg.append(i)
        if i.op in ('s_branch', 's_endpgm', 's_setpc_b64'):
            check_seq(seg, errs); seg = []
    check_seq(seg, errs)
    for k, i in enumerate(ins):
        if i.op.startswith(('s_cbranch', 's_branch')):
            t = labels[i.ops[0]]
            pre = []
            for q in ins[max(0, k - 14):k + 1]:
                pre.append(q)
                if q is not i and q.op in ('s_branch', 's_endpgm'): pre = []
            post = []
            for q in ins[t:t + 14]:
                post.append(q)
                if q.op in ('s_branch', 's_endpgm'): break
            check_seq(pre + post, errs, len(pre))
    return sorted(errs)

if __name__ == '__main__':
    e = lint(open(sys.argv[1]).read())
    for x in e: print(f"HAZARD L{x[0]}->L{x[1]} need {x[2]} have {x[3]}: {x[4]}  ==>  {x[5]}")
    print("hazards:", len(e))
```

```python
import sys, math, struct

NAME = "gated_mix__mha_block_cached__swiglu_ffn__decode_kernel"

def f2u(x):
    return struct.unpack('<I', struct.pack('<f', x))[0]

LOG2E = 1.4426950408889634
CSC = 0.0625 * LOG2E

QL, ML, TAG, WF, TK, OP, TB1, TBQ, STG = 0, 512, 544, 548, 560, 1024, 4096, 8192, 16384
TQ = STG
PP, PS = 272, 544
SC = STG + 4 * 32768
LDS_SIZE = SC + 8192
XS_OFF = 0xE0000
FD_OFF = 1024
EP_OFF, MLS_OFF, GU_OFF, QS_OFF, YS_OFF = 0, 0xF0000, 8192, 0x10000, 0x50000
WS_N = 1 << 20
assert YS_OFF + 56 * 10240 <= XS_OFF and XS_OFF + 65536 <= MLS_OFF and MLS_OFF + 32768 <= WS_N and FD_OFF + 56 * 128 <= GU_OFF and GU_OFF + 8 * 7168 <= QS_OFF
DBG_OFF = 16 << 20
NW = int(__import__('os').environ.get('NW','6'))
NWAVES = 8
BOUND = 0x20000
CB = 0x200000


def jobmap():
    import numpy as np
    wg = np.arange(256); x8 = wg & 7; r = wg >> 3; b = r & 7; role = (r >> 3) & 1
    z = (7 - b) * 16 + (r >> 4) * 8 + x8
    return np.where(role == 0, np.where(z < 112, z, 200), np.where(z < 56, 112 + z, 200))


def gen(debug=False, ring=5, wqflag='nt', wflag='nt', oflag='', npoll=3, qsleep=8, exp='', csleep=8, cthr=64, cthr2=128, cdep=5, cpre=260, cdel=0,
        kflag='nt', vflag='nt', fsleep=64, LV=(0, 2, 4), dl=60, cc=40, tp0=1200, tpp=400, tq0=1450, tqj=2, rst=256,
        rs=(3, 20), csl=8, tql=250, xf=12, cwait=128, d2=3, lring=2, tw=160, wdelay=0, qdelay=0, wpace=0, tprio=0, pf=0, pdel=0, pflag='', lq=0, lp=0, lpf=0, wsp=1, wst=4, wsb=0, xflag='', outf='', d3=4, xb=0, rot=None, il=0, grp=0, grot=0, stk=0, rb=0, pm=None, xm=(), tb=12, clr=0, ns=2, cdb=1, mst=128, pb=0, mlr=1, cpl=1, tps=0, tpo=0, tpf='nt', tpb=0, b1=0, qm_=0, qfirst=0, qrs=0, kl=0.0, pe=256, xf2=None, ks=0, sv=0, qk=0, qtb=10, qcen=1, jm=0, nm=0, par=0, xfo=None, dlo=None, om=0xaa, pff=0, jr=0, jdel=0, tpb7=7, LVv=None, dw=None, qsf='sc1', qlf='sc1', r0=0xffff, tp2=None):
    L = []
    A = L.append
    assert lring == 2 and ring <= 6 and cpre <= 260 and cwait <= 256 and tw + wsp * wst <= 256 and (8 // ns + 1) * (cdep - 1) <= 63 and not clr
    depth = ring * 8
    NL, LT, TL = 8 // ns, 16 // ns, 4 * ns
    lgT = TL.bit_length() - 1; lgL = LT.bit_length() - 1; lgm = mst.bit_length() - 1

    hdr = open('gated_mix__mha_block_cached__swiglu_ffn__decode.s.ref').read().split('\n')
    for line in hdr:
        if line.startswith('; @launch'):
            break
        A(line)
    A(f"; @launch grid=(256,1,1) block=({NWAVES*64},1,1) lds={LDS_SIZE + (2048 if 'tl' in exp else 0)}")
    A('.amdgcn_target "amdgcn-amd-amdhsa--gfx950"')
    A(".text")
    A(f".globl {NAME}")
    A(".p2align 8")
    A(f".type {NAME},@function")
    A(f"{NAME}:")

    SB = 80
    def stamp(k):
        if debug:
            A(f"  s_memrealtime s[{SB+2*k}:{SB+2*k+1}]")

    def end():
        if debug:
            A("  s_branch L_dbg")
        else:
            A("  s_endpgm")

    def srd(dst, ptr, off_sgpr, nrec):
        if off_sgpr is None:
            A(f"  s_mov_b32 s{dst}, s{ptr}")
            A(f"  s_and_b32 s{dst+1}, s{ptr+1}, 0xffff")
        else:
            A(f"  s_add_u32 s{dst}, s{ptr}, {off_sgpr}")
            A(f"  s_addc_u32 s{dst+1}, s{ptr+1}, 0")
            A(f"  s_and_b32 s{dst+1}, s{dst+1}, 0xffff")
        A(f"  s_mov_b32 s{dst+2}, {nrec}")
        A(f"  s_mov_b32 s{dst+3}, 0x20000")

    def rnd2(a):
        A(f"  v_cvt_pk_bf16_f32 v{a+1}, v{a}, v{a+1}")
        A(f"  v_lshlrev_b32 v{a}, 16, v{a+1}")
        A(f"  v_and_b32 v{a+1}, 0xffff0000, v{a+1}")

    def rnd1(a):
        A(f"  v_cvt_pk_bf16_f32 v{a}, v{a}, v{a}")
        A(f"  v_lshlrev_b32 v{a}, 16, v{a}")

    WO = 96
    DR = (236, 240, 244, 252)
    def woreg(t, c, hi): return WO + 32 * (t >> 1) + 8 * c + 4 * (t & 1) + 2 * hi

    def tail_setup():
        A("  v_and_b32 v3, 3, v0")
        A(f"  v_mul_u32_u24 v3, {PS}, v3")
        A("  v_bfe_u32 v5, v0, 2, 1")
        A(f"  v_mul_u32_u24 v7, {PP}, v5")
        A("  v_add_u32 v3, v3, v7")
        A("  v_lshrrev_b32 v7, 4, v0")
        A("  v_lshl_add_u32 v3, v7, 4, v3")
        A("  v_mul_u32_u24 v5, 0xaaaa, v5")
        A("  v_add_u32 v5, 0x4444, v5")
        A("  v_lshlrev_b32 v7, 2, v0")
        for d in DR:
            A(f"  v_mov_b64 v[{d}:{d+1}], 0")
            A(f"  v_mov_b64 v[{d+2}:{d+3}], 0")

    def traddr(dst, t0, base):
        A(f"  v_bfe_u32 v{t0}, v0, 2, 2")
        A(f"  v_lshlrev_b32 v{t0}, 7, v{t0}")
        A(f"  v_lshrrev_b32 v{dst}, 4, v0")
        A(f"  v_lshl_add_u32 v{t0}, v{dst}, 10, v{t0}")
        A(f"  v_and_b32 v{dst}, 3, v0")
        A(f"  v_lshl_add_u32 v{dst}, v{dst}, 3, v{t0}")
        A(f"  v_add_u32 v{dst}, {base}, v{dst}")

    A("  s_cmp_ge_u32 s2, 256")
    A("  s_cbranch_scc1 L_end")
    A("  s_load_dwordx16 s[4:19], s[0:1], 0")
    A("  s_load_dwordx8 s[20:27], s[0:1], 64")
    A("  s_load_dwordx2 s[28:29], s[0:1], 96")
    if debug:
        for r in range(SB, SB + 16): A(f"  s_mov_b32 s{r}, 0")
        A("  s_mov_b32 s47, 0")
        A("  s_mov_b32 s101, 0")
    stamp(0)
    A("  v_lshrrev_b32 v1, 6, v0")
    A("  v_and_b32 v0, 63, v0")
    A("  v_readfirstlane_b32 s3, v1        ; wave")
    A("  v_lshrrev_b32 v2, 4, v0           ; g")
    A("  v_and_b32 v3, 15, v0              ; n / j")
    A("  s_and_b32 s30, s2, 7              ; x8")
    A("  s_lshr_b32 s31, s2, 3             ; r")
    A("  s_and_b32 s32, s31, 7             ; b")
    A("  s_bfe_u32 s33, s31, 0x10003       ; role")
    A("  s_lshl_b32 s35, s30, 5")
    A("  s_add_u32 s35, s35, s31           ; q slice")
    A("  s_lshr_b32 s36, s31, 4")
    A(f"  s_lshl1_add_u32 s34, s{32 if xb else 30}, s36     ; h")
    A("  s_lshl3_add_u32 s62, s36, s30")
    A("  s_sub_u32 s36, 7, s32")
    A("  s_lshl4_add_u32 s62, s36, s62     ; z")
    if xb: A("  s_mov_b32 s32, s30")
    if nm:
        A("  s_lshr_b32 s33, s30, 2            ; role")
        A("  s_and_b32 s34, s30, 3")
        A("  s_lshr_b32 s36, s31, 3")
        A("  s_lshl2_add_u32 s34, s34, s36     ; h")
    if ns == 4:
        A("  s_lshl4_add_u32 s39, s33, s34     ; tile index")
    else:
        A(f"  s_lshr_b32 s36, s34, {lgT}")
        A("  s_lshl1_add_u32 s36, s36, s33")
        A(f"  s_and_b32 s37, s34, {TL-1}")
        A(f"  s_lshl{lgT}_add_u32 s39, s36, s37     ; tile index")
    A("  s_mul_i32 s72, s32, 10240")
    A("  s_lshl_b32 s36, s39, 8")
    A("  s_add_u32 s72, s72, s36")
    A(f"  s_add_u32 s72, s72, {YS_OFF}")
    A("  s_sub_u32 s38, s3, 2")
    A("  s_cmp_lt_u32 s38, 4")
    A("  s_cbranch_scc1 L_stream")
    A("  s_setprio 3")
    A("  v_lshlrev_b32 v6, 4, v0           ; lane*16")
    A("  v_and_b32 v11, 7, v3              ; n&7")
    A("  v_mov_b32 v14, 0")
    A("  s_cmp_eq_u32 s3, 1")
    A("  s_cbranch_scc1 L_j")
    A("  s_cmp_lg_u32 s3, 0")
    A("  s_cbranch_scc1 L_w")

    WB, XB, AB, PB = 32, 88, 144, 200
    A("  s_memrealtime s[68:69]")
    QS = 2 if 'q128' in exp else 1 if ('q64' in exp or qk) else 0
    A(f"  v_lshrrev_b32 v4, {1+QS}, v0")
    A("  v_lshlrev_b32 v4, 13, v4")
    A(f"  v_and_b32 v5, {(2<<QS)-1}, v0")
    A("  v_lshl_add_u32 v4, v5, 4, v4      ; (l>>1)*8192 + (l&1)*16")
    A("  v_mul_u32_u24 v5, 896, v11")
    A("  v_lshrrev_b32 v7, 3, v3")
    A("  v_lshl_add_u32 v5, v7, 6, v5")
    A("  v_lshl_add_u32 v5, v2, 4, v5      ; (n&7)*896 + (n>>3)*64 + g*16")
    A("  s_lshl_b32 s36, s35, 5            ; h*512 + i*32")
    if QS:
        A(f"  s_andn2_b32 s36, s36, {(32<<QS)-1}")
        A(f"  s_and_b32 s30, s35, {(1<<QS)-1}")
        A(f"  s_mul_i32 s30, s30, {(448>>QS)*8192}")
        A("  s_add_u32 s36, s36, s30")
    A("  s_sub_u32 s30, 448*8192, s36")
    A("  s_mov_b32 s44, 0")
    A("  v_lshlrev_b32 v9, 3, v0           ; lane*8")
    if 'k0' in exp: stamp(5)
    A("  s_waitcnt lgkmcnt(0)")
    if 'k0' in exp: stamp(6)
    if wsb:
        A(f"  s_mov_b32 s60, {hex((wsb << 20) + EP_OFF)}")
        A(f"  s_load_dword s60, s[28:29], s60")
    else:
        A(f"  s_load_dword s60, s[28:29], {EP_OFF}")
    srd(56, 4, None, 7168)
    if qk:
        A("  s_and_b32 s45, s35, 1             ; k half")
        A("  s_mul_i32 s46, s45, 448")
    for u in range(4 if qk else 7):
        A(f"  buffer_load_dwordx4 v[{XB+4*u}:{XB+4*u+3}], v5, s[56:59], {'s46' if qk else 0} offen offset:{u*128} {xflag}")
    srd(48, 10, 's36', 0 if 'zq' in exp else 's30')
    for t in range(14):
        A(f"  buffer_load_dwordx4 v[{WB+4*t}:{WB+4*t+3}], v4, s[48:51], s44 offen {wqflag}")
        if t < 13:
            A(f"  s_add_u32 s44, s44, {(32>>QS)*8192}")
    if 'k0' in exp: stamp(4)
    A("  s_barrier")
    if 'k0' in exp: stamp(7)
    srd(40, 28, hex(wsb << 20) if wsb else None, WS_N)
    if qk:
        A("  v_mul_u32_u24 v7, 544, v2")
        A("  v_lshrrev_b32 v8, 2, v3")
        A("  v_lshl_add_u32 v7, v8, 6, v7")
        A("  v_and_b32 v8, 3, v3")
        A("  v_lshl_add_u32 v7, v8, 3, v7      ; g*544 + (n>>2)*64 + (n&3)*8")
        A("  v_lshlrev_b32 v8, 11, v11")
        A("  v_lshrrev_b32 v10, 3, v3")
        A("  v_lshl_add_u32 v8, v10, 6, v8")
        A("  v_lshl_add_u32 v8, v2, 4, v8      ; (n&7)*2048 + (n>>3)*64 + g*16")
        A("  v_lshrrev_b32 v10, 5, v0")
        A("  v_lshl_add_u32 v10, v10, 5, v6")
        A("  s_lshl3_add_u32 s46, s34, s32")
        A("  s_lshl_b32 s46, s46, 11")
        A(f"  s_add_u32 s46, s46, {QS_OFF}")
        A("  s_lshl_b32 s45, s45, 10")
        A("  s_lshr_b32 s36, s35, 4")
        A("  s_lshl_b32 s36, s36, 14")
        A("  s_add_u32 s45, s45, s36")
        A("  s_bfe_u32 s36, s35, 0x30001")
        A("  s_lshl_b32 s36, s36, 7")
        A("  s_add_u32 s45, s45, s36")
        A(f"  s_add_u32 s45, s45, {QS_OFF}           ; q publish offset")
        A(f"  s_movk_i32 s73, {hex((1 << qtb) - 1)}")
    else:
        A("  v_lshlrev_b32 v7, 8, v2")
        A("  v_lshl_add_u32 v7, v3, 3, v7      ; g*256 + n*8")
        A("  v_lshlrev_b32 v8, 6, v11")
        A("  v_lshl_add_u32 v8, v2, 4, v8      ; (n&7)*64 + g*16")
        A("  v_lshrrev_b32 v10, 2, v0")
        A("  v_lshlrev_b32 v10, 9, v10")
        A("  v_and_b32 v12, 3, v0")
        A("  v_lshl_add_u32 v10, v12, 4, v10   ; (l>>2)*512 + (l&3)*16")
        A("  s_lshl_b32 s46, s34, 13")
        A(f"  s_add_u32 s46, s46, {QS_OFF}")
        A("  s_lshl_b32 s45, s35, 9")
        A(f"  s_add_u32 s45, s45, {QS_OFF}           ; q publish offset")
        A("  s_lshl_b32 s36, s32, 6")
        A("  s_add_u32 s46, s46, s36")
        A("  s_mov_b32 s64, 0x00ff00ff")
        A("  s_mov_b32 s65, 0x00ff00ff")
    A("  s_waitcnt lgkmcnt(0)")
    A("  s_add_u32 s60, s60, 1")
    A("  v_mov_b32 v25, s60")
    A("  v_mov_b32 v27, s60")
    A(f"  ds_write_b32 v14, v25 offset:{TAG}")
    if 'nq' in exp:
        A("  s_waitcnt lgkmcnt(0)")
        A("  s_barrier")
    if qk:
        QT = 12
        A(f"  v_mov_b32 v{QT}, s60")
        def qm(sx):
            for c in range(2):
                d = 16 + 8 * c + 4 * (sx & 1)
                a = AB + 8 * sx + 4 * c
                C = f"v[{d}:{d+3}]" if sx >= 2 else "0"
                A(f"  v_mfma_f32_16x16x32_bf16 v[{d}:{d+3}], v[{a}:{a+3}], v[{XB+4*(sx>>1)}:{XB+4*(sx>>1)+3}], {C}")
        for sx in range(7):
            A(f"  s_waitcnt vmcnt({12-2*sx})")
            for e in range(2):
                t = 2 * sx + e
                A(f"  ds_write_b128 v10, v[{WB+4*t}:{WB+4*t+3}] offset:{TQ+t*1088}")
            for c in range(2):
                for hi in range(2):
                    a = AB + 8 * sx + 4 * c + 2 * hi
                    A(f"  ds_read_b64_tr_b16 v[{a}:{a+1}], v7 offset:{TQ+sx*2176+c*32+hi*256}")
            if sx >= 1:
                A("  s_waitcnt lgkmcnt(6)")
                qm(sx - 1)
        A("  s_waitcnt lgkmcnt(0)")
        qm(6)
        A("  s_nop 7")
        for r in range(4):
            A(f"  v_add_f32_dpp v{16+r}, v{20+r}, v{16+r} row_ror:8 bank_mask:0x3")
            A(f"  v_add_f32_dpp v{16+r}, v{24+r}, v{28+r} row_ror:8 bank_mask:0xc")
        for r in range(4):
            A(f"  v_bfi_b32 v{16+r}, s73, v{QT}, v{16+r}")
        A(f"  buffer_store_dwordx4 v[16:19], v8, s[40:43], s45 offen {qsf}")
        stamp(2)
        if qfirst: A(f"  s_sleep {qfirst}")
        A(f"  s_mov_b32 s47, {-BOUND}")
        A(f"  v_mov_b32 v13, {1 << (qtb - 1)}")
        A("L_qpoll:")
        A(f"  buffer_load_dwordx4 v[{PB}:{PB+3}], v6, s[40:43], s46 offen {qlf}")
        A(f"  buffer_load_dwordx4 v[{PB+4}:{PB+7}], v6, s[40:43], s46 offen offset:1024 {qlf}")
        A("  s_waitcnt vmcnt(0)")
        A("  s_mov_b64 exec, -1")
        for r in range(4):
            A(f"  v_bitop3_b32 v{20+r}, v{PB+2*r}, v{PB+2*r+1}, v{QT} bitop3:0x7e")
        A("  v_or3_b32 v20, v20, v21, v22")
        A("  v_bitop3_b32 v20, v20, s73, v23 bitop3:0xc8")
        A("  v_cmp_ne_u32 vcc, 0, v20")
        A("  s_cbranch_vccz L_qok")
        if qrs: A(f"  s_sleep {qrs}")
        if qm_: A("  s_mov_b64 exec, vcc")
        A("  s_add_u32 s47, s47, 1")
        A("  s_cbranch_scc0 L_qpoll")
        A("  s_mov_b64 exec, -1")
        A("L_qok:")
        if qcen:
            for r in range(8):
                A(f"  v_bfi_b32 v{PB+r}, s73, v13, v{PB+r}")
        A(f"  v_pk_add_f32 v[{PB}:{PB+1}], v[{PB}:{PB+1}], v[{PB+4}:{PB+5}]")
        A(f"  v_pk_add_f32 v[{PB+2}:{PB+3}], v[{PB+2}:{PB+3}], v[{PB+6}:{PB+7}]")
        A(f"  v_cvt_pk_bf16_f32 v{PB}, v{PB}, v{PB+1}")
        A(f"  v_cvt_pk_bf16_f32 v{PB+1}, v{PB+2}, v{PB+3}")
        A(f"  ds_write_b64 v9, v[{PB}:{PB+1}] offset:{QL}")
    else:
        def qm(t):
            d = 16 + 4 * (t & 1)
            C = f"v[{d}:{d+3}]" if t >= 2 else "0"
            A(f"  v_mfma_f32_16x16x32_bf16 v[{d}:{d+3}], v[{AB+4*t}:{AB+4*t+3}], v[{XB+4*(t>>1)}:{XB+4*(t>>1)+3}], {C}")
        for t in range(14):
            A(f"  s_waitcnt vmcnt({13-t})")
            A(f"  ds_write_b128 v6, v[{WB+4*t}:{WB+4*t+3}] offset:{TQ+t*1024}")
            A(f"  ds_read_b64_tr_b16 v[{AB+4*t}:{AB+4*t+1}], v7 offset:{TQ+t*1024}")
            A(f"  ds_read_b64_tr_b16 v[{AB+4*t+2}:{AB+4*t+3}], v7 offset:{TQ+t*1024+128}")
            if t >= 2:
                A("  s_waitcnt lgkmcnt(6)")
                qm(t - 2)
        A("  s_waitcnt lgkmcnt(3)")
        qm(12)
        A("  s_waitcnt lgkmcnt(0)")
        qm(13)
        A("  s_nop 7")
        for r in range(4):
            A(f"  v_add_f32_dpp v{16+r}, v{20+r}, v{16+r} row_ror:8")
        A("  v_cvt_pk_bf16_f32 v24, v16, v17")
        A("  v_cvt_pk_bf16_f32 v26, v18, v19")
        A("  s_mov_b64 exec, s[64:65]")
        if 'np' not in exp: A("  buffer_store_dwordx4 v[24:27], v8, s[40:43], s45 offen sc1")
        A("  s_mov_b64 exec, -1")
        stamp(2)
        if 'np' in exp or 'nl' in exp: A("  s_branch L_qdone")
        if qfirst: A(f"  s_sleep {qfirst}")
        if qm_:
            def qpl():
                A(f"  buffer_load_dwordx4 v[{PB}:{PB+3}], v10, s[40:43], s46 offen sc1")
            for k in range(npoll):
                qpl()
                if k < npoll - 1 and qsleep:
                    A(f"  s_sleep {qsleep}")
            A(f"  s_mov_b32 s47, {-BOUND}")
            A("L_qpoll:")
            A(f"  s_waitcnt vmcnt({npoll-1})")
            A(f"  v_bitop3_b32 v12, v{PB+1}, v{PB+3}, v25 bitop3:0x7e")
            A("  v_cmp_ne_u32 vcc, 0, v12")
            A("  s_cbranch_vccz L_qok")
            if qrs: A(f"  s_sleep {qrs}")
            A("  s_mov_b64 exec, vcc")
            qpl()
            A("  s_mov_b64 exec, -1")
            A("  s_add_u32 s47, s47, 1")
            A("  s_cbranch_scc0 L_qpoll")
            A("L_qok:")
            A(f"  ds_write2_b32 v9, v{PB}, v{PB+2} offset0:{QL//4} offset1:{QL//4+1}")
        else:
            def qpl(k):
                A(f"  buffer_load_dwordx4 v[{PB+4*k}:{PB+4*k+3}], v10, s[40:43], s46 offen sc1")
            for k in range(npoll):
                qpl(k)
                if k < npoll - 1 and qsleep:
                    A(f"  s_sleep {qsleep}")
            A("  s_mov_b32 s47, 0")
            A("L_qpoll:")
            for k in range(npoll):
                A(f"  s_waitcnt vmcnt({npoll-1})")
                A(f"  v_cmp_ne_u32 vcc, s60, v{PB+4*k+1}")
                A(f"  v_cmp_ne_u32 s[66:67], s60, v{PB+4*k+3}")
                A("  s_or_b64 vcc, vcc, s[66:67]")
                A(f"  s_cbranch_scc0 L_qok{k}")
                qpl(k)
            A("  s_add_u32 s47, s47, 1")
            A(f"  s_cmp_lt_u32 s47, {BOUND}")
            A("  s_cbranch_scc1 L_qpoll")
            A("  s_waitcnt vmcnt(0)")
            for k in range(npoll):
                A(f"L_qok{k}:")
                A(f"  ds_write2_b32 v9, v{PB+4*k}, v{PB+4*k+2} offset0:{QL//4} offset1:{QL//4+1}")
                if k < npoll - 1:
                    A("  s_branch L_qdone")
    A("L_qdone:")
    stamp(1)
    A("  s_waitcnt lgkmcnt(0)")
    if 'nq' not in exp: A("  s_barrier")
    stamp(3)
    A("  s_mov_b32 s38, 4")
    A(f"  s_mov_b32 s46, {TBQ}")
    for _ in range(qdelay): A(f"  s_sleep 32")
    A("  s_waitcnt vmcnt(0)")
    A("L_ltw:")
    A(f"  s_mul_i32 s36, s34, {0 if 'sh' in exp else 256*896}")
    A("  s_lshl_b32 s30, s38, 7")
    A("  s_add_u32 s36, s36, s30")
    srd(48, 12, 's36', 0 if 'no' in exp else 255 * 896 + 128)
    A("  s_mul_i32 s30, s38, 8*10240")
    A("  s_add_u32 s72, s72, s30")
    A("  v_lshrrev_b32 v4, 3, v0")
    A("  v_mul_u32_u24 v4, 896, v4")
    A("  v_and_b32 v5, 7, v0")
    A("  v_lshl_add_u32 v4, v5, 4, v4      ; (l>>3)*896 + (l&7)*16")
    A("  v_add_u32 v9, s46, v6")
    traddr(10, 5, 's46')
    A("  s_mov_b32 s44, 0")
    if lp > lq:
        A("  s_cmp_lg_u32 s3, 0")
        A("  s_cselect_b64 vcc, -1, 0")
    for k in range(32):
        A(f"  buffer_load_dwordx4 v[{WO+4*k}:{WO+4*k+3}], v4, s[48:51], s44 offen {oflag}")
        if k < 31:
            A("  s_add_u32 s44, s44, 8*896")
            if lq: A(f"  s_sleep {lq}")
            if lp > lq:
                A(f"  s_cbranch_vccz L_lp{k}")
                A(f"  s_sleep {lp-lq}")
                A(f"L_lp{k}:")
    for u in range(4):
        A(f"  s_waitcnt vmcnt({24-8*u})")
        for k in range(8):
            r = WO + 32 * u + 4 * k
            A(f"  ds_write_b128 v9, v[{r}:{r+3}] offset:{k*1024}")
        for tt in range(2):
            for c in range(4):
                for hi in range(2):
                    r = woreg(2 * u + tt, c, hi)
                    A(f"  ds_read_b64_tr_b16 v[{r}:{r+1}], v10 offset:{tt*4096+hi*512+c*32}")
    A("  s_waitcnt lgkmcnt(0)")
    if 'k0' not in exp: stamp(4)
    A("  s_cmp_lg_u32 s3, 0")
    A("  s_cbranch_scc1 L_wstage")

    A("  v_mov_b32 v12, 0")
    A("  v_mov_b32 v14, s60")
    A("  s_movk_i32 s75, 256               ; cap")
    A(f"  s_add_u32 s68, s68, {cc}          ; origin")
    A("  s_lshr_b32 s30, s2, 3")
    A("  s_and_b32 s65, s2, 7")
    A(f"  s_mul_i32 s65, s65, {rst}")
    A(f"  s_add_u32 s65, s65, {XS_OFF}")
    A("  s_mov_b32 s74, 0x7fffffff")
    A(f"  s_cmp_eq_u32 s30, {rs[0]}")
    A(f"  s_cselect_b32 s74, {tp0}, s74")
    A(f"  s_cmp_eq_u32 s30, {rs[1]}")
    A(f"  s_cselect_b32 s74, {tp0}, s74")
    A(f"  s_cselect_b32 s30, {8*rst}, 0")
    A("  s_add_u32 s65, s65, s30")
    A(f"  s_mov_b32 s64, {XS_OFF}")
    A("  s_and_b32 s79, s2, 31")
    A(f"  s_mul_i32 s79, s79, {tqj}")
    A(f"  s_add_u32 s79, s79, {tq0}")
    A(f"  v_mul_u32_u24 v20, {rst}, v3")
    A("  s_mov_b32 s69, 0x7fffffff")
    A(f"  s_mov_b32 s76, {hex(r0)}")
    if dlo is not None:
        A("  s_and_b32 s77, s2, 7")
        A(f"  s_bitcmp1_b32 {hex(om)}, s77")
        A(f"  s_movk_i32 s77, {dlo}")
        A(f"  s_cselect_b32 s77, s77, {dl}")
    if debug: A("  s_mov_b32 s47, 0")
    tail_setup()
    A("L_ct:")
    A(f"  s_sleep {csl}")
    A("  s_memrealtime s[66:67]")
    A(f"  ds_read_b32 v13, v12 offset:{TK}")
    if debug: A("  s_add_u32 s101, s101, 0x10000")
    A("  s_waitcnt lgkmcnt(0)")
    A("  s_sub_u32 s31, s66, s68")
    A(f"  s_add_u32 s67, s31, {dl if dlo is None else 's77'}")
    A("  s_mul_i32 s67, s67, s76")
    if kl: A(f"  s_add_u32 s67, s67, {int(kl*pe*65536)}")
    if ks:
        A(f"  s_lshr_b32 s30, s67, {ks}")
        A("  s_sub_u32 s30, s67, s30")
        A(f"  s_add_u32 s30, s30, {(pe << 16) >> ks}")
        A("  s_max_u32 s67, s67, s30")
    A("  s_pack_lh_b32_b16 s67, s75, s67")
    A("  v_mov_b32 v18, s67")
    A(f"  ds_write_b32 v12, v18 offset:{TK+4}")
    A("  v_readfirstlane_b32 s30, v13      ; p")
    A("  s_cmp_ge_u32 s30, s75")
    A("  s_cbranch_scc1 L_ctx")
    A("  s_cmp_lt_u32 s31, s74")
    A("  s_cbranch_scc1 L_ct1")
    A(f"  s_add_u32 s74, s74, {tpp}")
    A("  s_pack_ll_b32_b16 s30, s30, s66")
    A("  v_mov_b32 v15, s30")
    A("  s_mov_b64 exec, 1")
    A("  buffer_store_dwordx2 v[14:15], v12, s[40:43], s65 offen sc1")
    A("  s_mov_b64 exec, -1")
    A(f"  s_add_u32 s65, s65, {16*rst}")
    A(f"  s_cmp_ge_u32 s65, {XS_OFF+65536}")
    A("  s_cselect_b32 s74, 0x7fffffff, s74")
    A("L_ct1:")
    A("  s_cmp_lt_u32 s31, s79")
    A("  s_cbranch_scc1 L_ct2")
    A(f"  s_add_u32 s79, s79, {tpp}")
    A(f"  s_add_u32 s69, s31, {tql}")
    A(f"  buffer_load_dwordx2 v[16:17], v20, s[40:43], s64 offen")
    A(f"  s_add_u32 s64, s64, {16*rst}")
    A(f"  s_cmp_ge_u32 s64, {XS_OFF+65536}")
    A("  s_cselect_b32 s79, 0x7fffffff, s79")
    A("L_ct2:")
    A("  s_cmp_lt_u32 s31, s69")
    A("  s_cbranch_scc1 L_ct")
    A("  s_mov_b32 s69, 0x7fffffff")
    A("  s_waitcnt vmcnt(0)")
    A("  v_cmp_ne_u32 vcc, s60, v16")
    A("  v_lshrrev_b32 v18, 16, v17")
    A("  v_subrev_u32 v18, s68, v18")
    A("  v_and_b32 v18, 0xffff, v18")
    A("  v_cvt_f32_u32 v18, v18")
    A("  v_rcp_f32 v18, v18")
    A("  v_and_b32 v17, 0xffff, v17")
    A("  v_cvt_f32_u32 v17, v17")
    if debug:
        A("  s_and_b32 s30, vcc_lo, 0xffff")
        A("  s_bcnt1_i32_b32 s30, s30")
        A("  s_add_u32 s47, s47, s30")
        A("  s_add_u32 s47, s47, 0x1000")
    if sv:
        A("  s_not_b32 s30, vcc_lo")
        A("  s_bcnt1_i32_b32 s30, s30")
        A(f"  s_cmp_lt_u32 s30, {2*sv}")
        A("  s_cbranch_scc1 L_ct")
        A("  v_mul_f32 v17, v17, v18")
        A("  v_cvt_f32_u32 v18, s30")
        A("  v_cndmask_b32 v17, v17, v12, vcc")
        A("  v_rcp_f32 v18, v18")
    else:
        A("  s_cbranch_vccnz L_ct")
        A("  v_mul_f32 v17, v17, v18")
    for sh in (8, 4, 2, 1):
        A("  s_nop 1")
        A(f"  v_add_f32_dpp v17, v17, v17 row_ror:{sh}")
    if sv: A("  v_mul_f32 v17, v17, v18")
    A(f"  v_mul_f32 v17, 0x{f2u((32 if sv else 1)*4096.0*(1-kl)):x}, v17")
    A("  v_cvt_u32_f32 v17, v17")
    A("  v_min_u32 v17, 0xffff, v17")
    A("  s_nop 0")
    A("  v_readfirstlane_b32 s76, v17")
    A("  s_branch L_ct")
    A("L_ctx:")
    A("  s_waitcnt vmcnt(0) lgkmcnt(0)")
    if debug: A("  s_add_u32 s101, s101, s76")
    if 'k0' not in exp: stamp(5)
    A("  s_branch L_tail")

    A("L_w:")
    A("  s_sub_u32 s38, s3, 1")
    A("  s_sub_u32 s61, s3, 6")
    A("  s_lshl_b32 s46, s61, 16")
    A(f"  s_add_u32 s46, s46, {STG}")
    def touch():
        A("  s_lshl4_add_u32 s36, s32, s34     ; bh")
        A("  s_lshl_b32 s36, s36, 21")
        A("  s_cmp_eq_u32 s61, 0")
        A("  s_cselect_b32 s6, s6, s8")
        A("  s_cselect_b32 s7, s7, s9")
        srd(48, 6, 's36', 2 << 20)
        A(f"  v_mul_u32_u24 v4, {tps}, v0")
        A(f"  s_mov_b32 s44, {tpo}")
        for k in range(max(1, (2 << 20) // tps // 64)):
            A(f"  buffer_load_dword v32, v4, s[48:51], s44 offen {tpf}")
            A(f"  s_add_u32 s44, s44, {tps*64}")
    def pfetch():
        A("  s_lshl1_add_u32 s36, s35, s61")
        A("  s_mul_i32 s36, s36, 7168")
        srd(48, 12, 's36', 7168)
        A("  s_movk_i32 s44, 4096")
        for k in range(7):
            A(f"  buffer_load_dwordx4 v[{32+4*k}:{35+4*k}], v6, s[48:51], {'s44' if k > 3 else '0'} offen offset:{(k%4)*1024} {pflag}")
            if lpf and k < 6: A(f"  s_sleep {lpf}")
    def pfetchf():
        A("  s_lshl1_add_u32 s36, s31, s61")
        A("  s_mul_i32 s36, s36, 7*3584")
        A("  s_and_b32 s37, s30, 3")
        A("  s_mul_i32 s37, s37, 896")
        A("  s_add_u32 s36, s36, s37")
        A("  s_cmp_lt_u32 s30, 4")
        A("  s_cselect_b32 s16, s16, s18")
        A("  s_cselect_b32 s17, s17, s19")
        srd(52, 16, 's36', 6*3584 + 896)
        A("  s_mov_b32 s37, 0")
        A("  s_mov_b32 exec_hi, 0xffffff")
        for k in range(7):
            A(f"  buffer_load_dwordx4 v[{64+4*k}:{67+4*k}], v6, s[52:55], s37 offen {pflag}")
            if k < 6: A("  s_add_u32 s37, s37, 3584")
        A("  s_mov_b32 exec_hi, -1")
        A("  s_lshl1_add_u32 s36, s35, s61")
        A("  s_mul_i32 s36, s36, 3136")
        srd(56, 20, 's36', 3136)
        for k in range(4):
            A(f"  buffer_load_dwordx4 v[{96+4*k}:{99+4*k}], v6, s[56:59], 0 offen offset:{k*1024} {pflag}")
    if tps and tpb == 0:
        A("  s_waitcnt lgkmcnt(0)")
        touch()
    if 'k0' in exp: stamp(1)
    if pf == 3 or pff == 3: A("  s_waitcnt lgkmcnt(0)")
    if 'k0' in exp: stamp(6)
    if pff == 3: pfetchf()
    if pf == 3: pfetch()
    if 'k0' in exp: stamp(2)
    A("  s_barrier")
    if 'k0' in exp: stamp(7)
    A("  s_waitcnt lgkmcnt(0)")
    if tps and tpb == 1: touch()
    srd(40, 28, hex(wsb << 20) if wsb else None, WS_N)
    if pdel and (pf == 1 or pff == 1): A(f"  s_sleep {pdel}")
    if pff == 1: pfetchf()
    if pf == 1: pfetch()
    A("  s_barrier")
    stamp(3)
    if pff == 2: pfetchf()
    if pf == 2: pfetch()
    A(f"  ds_read_b32 v13, v14 offset:{TAG}")
    for _ in range(wdelay): A(f"  s_sleep 32")
    A("  s_waitcnt lgkmcnt(0) vmcnt(0)")
    A("  v_readfirstlane_b32 s60, v13")
    A("  s_branch L_ltw")
    A("L_wstage:")
    A(f"  s_mul_i32 s36, s34, {0 if 'sh' in exp else 256*896}")
    A("  s_lshl_b32 s30, s61, 8")
    A("  s_add_u32 s36, s36, s30")
    srd(48, 12, 's36', 0 if 'no' in exp else 255 * 896 + 256)
    A("  v_mul_u32_u24 v4, 896, v2")
    A("  v_lshl_add_u32 v4, v3, 4, v4      ; g*896 + n*16")
    A("  v_lshrrev_b32 v9, 3, v3")
    A("  v_lshlrev_b32 v9, 15, v9")
    A("  v_lshl_add_u32 v9, v2, 7, v9")
    A("  v_lshl_add_u32 v9, v11, 4, v9")
    A("  v_add_u32 v9, s46, v9             ; (n>>3)*32768 + g*128 + (n&7)*16")
    A("  s_mov_b32 s44, 0")
    A("L_ws:")
    for k in range(16):
        A(f"  buffer_load_dwordx4 v[{32+4*k}:{35+4*k}], v4, s[48:51], s44 offen {oflag}")
        A("  s_add_u32 s44, s44, 4*896")
        if lp and k < 15: A(f"  s_sleep {lp}")
    for k in range(16):
        if k % 4 == 0: A(f"  s_waitcnt vmcnt({12-k})")
        A(f"  ds_write_b128 v9, v[{32+4*k}:{35+4*k}] offset:{k*512}")
    A("  v_add_u32 v9, 8192, v9")
    A("  s_waitcnt lgkmcnt(0)")
    for _ in range(wpace): A(f"  s_sleep 32")
    A("  s_cmp_lt_u32 s44, 256*896")
    A("  s_cbranch_scc1 L_ws")
    A("  v_mov_b32 v13, 1")
    A("  s_mov_b64 exec, 1")
    A(f"  ds_add_u32 v14, v13 offset:{WF}")
    A("  s_mov_b64 exec, -1")
    tail_setup()
    A("  s_waitcnt lgkmcnt(0)")
    stamp(5)
    A("  s_branch L_tail")

    def mk_voffy(dst, tmp):
        A(f"  v_mul_u32_u24 v{dst}, 10240, v11")
        A(f"  v_lshl_add_u32 v{dst}, v2, 4, v{dst}")
        A(f"  v_lshrrev_b32 v{tmp}, 3, v3")
        A(f"  v_lshl_add_u32 v{dst}, v{tmp}, 6, v{dst}   ; (n&7)*10240 + (n>>3)*64 + g*16")

    def wait_done(lab, off):
        A("  s_mov_b32 s47, 0")
        A(f"{lab}:")
        A(f"  buffer_load_dword v16, v13, s[40:43], s76 offen offset:{off} sc1")
        A("  s_waitcnt vmcnt(0)")
        A("  v_cmp_ne_u32 vcc, s60, v16")
        A(f"  s_cbranch_vccz {lab}x")
        A(f"  s_sleep {fsleep}")
        A("  s_add_u32 s47, s47, 1")
        A(f"  s_cmp_lt_u32 s47, {BOUND}")
        A(f"  s_cbranch_scc1 {lab}")
        A(f"{lab}x:")

    A("L_j:")
    if nm: A("  s_bfe_u32 s33, s31, 0x10003")
    if jm:
        mem = [x for x in range(8) if (jm >> x) & 1]; oth = [x for x in range(8) if not (jm >> x) & 1]
        assert len(mem) == 4
        tab = sum(((2 * (mem.index(x) if x in mem else oth.index(x))) | (0 if x in mem else 8)) << (4 * x) for x in range(8))
        A("  s_lshl_b32 s30, s30, 2")
        A(f"  s_lshr_b32 s30, {hex(tab)}, s30")
        A("  s_andn2_b32 s62, s62, 7")
        A("  s_or_b32 s62, s62, s33")
        A("  s_bfe_u32 s33, s30, 0x10003")
        A("  s_and_b32 s30, s30, 6")
        A("  s_or_b32 s62, s62, s30")
    if jr:
        A("  s_and_b32 s36, s62, 7")
        A("  s_mul_i32 s36, s36, 7")
        A("  s_lshr_b32 s37, s62, 3")
        A("  s_add_u32 s36, s36, s37")
        A("  s_lshl_b32 s37, s33, 6")
        A("  s_add_u32 s37, s37, s62")
        A("  s_cmp_lt_u32 s37, 56")
        A("  s_cselect_b32 s62, s36, s62")
    mk_voffy(7, 8)
    if clr:
        A("  s_mov_b32 s75, s72")
        A("  v_mul_u32_u24 v20, 8*10240, v2")
        A("  v_lshl_add_u32 v20, v3, 4, v20    ; g*81920 + n*16")
    A("  v_mov_b32 v13, 0")
    A(f"  ds_write_b32 v13, v13 offset:{WF}")
    A(f"  v_mov_b32 v16, {4*ring}")
    A("  v_mov_b32 v17, 0xffff0100")
    A(f"  ds_write_b64 v13, v[16:17] offset:{TK}")
    A("  s_mov_b32 s77, 10")
    A("  s_movk_i32 s78, 512")
    A("  s_lshl_b32 s79, s32, 12")
    A(f"  s_lshl_b32 s30, s39, {lgm}")
    A("  s_add_u32 s79, s79, s30")
    A(f"  s_add_u32 s79, s79, {MLS_OFF}")
    A("  s_lshl_b32 s74, s62, 10")
    A(f"  s_add_u32 s74, s74, {GU_OFF}      ; G/U piece")
    A("  s_sub_u32 s30, s62, 56")
    A("  s_lshr_b32 s38, s30, 3            ; F2 cg")
    A("  s_and_b32 s30, s30, 7             ; F2 ks")
    A("  s_mul_i32 s72, s38, 4*20480")
    A("  s_lshl_b32 s39, s30, 8")
    A("  s_add_u32 s72, s72, s39")
    A(f"  s_add_u32 s72, s72, {YS_OFF + 32*256}   ; F2 tiles")
    A("  s_lshl_b32 s76, s62, 7")
    A(f"  s_movk_i32 s73, {hex((1 << tb) - 1)}")
    A("  s_mov_b32 s63, 0                  ; no final unit")
    A("  s_waitcnt lgkmcnt(0)")
    A("  s_barrier")
    srd(40, 28, hex(wsb << 20) if wsb else None, WS_N)
    srd(56, 4, None, 7168)
    A(f"  s_mov_b32 s46, {TB1}")
    A("  s_mov_b32 s44, 0")
    stamp(1)
    A("  s_barrier")
    stamp(3)
    A(f"  ds_read_b32 v15, v13 offset:{TAG}")
    A("  s_waitcnt lgkmcnt(0)")
    A("  v_readfirstlane_b32 s60, v15")
    if dw:
        n_, grp_, gs_, ks_, ws_, ws2_, fl_, rep_, act_, op_ = dw[:10]
        ro_ = dw[10] if len(dw) > 10 else list(range(rep_))
        srd(52, 28, hex(32 << 20), 64 << 20)
        lg_ = (grp_ // 16).bit_length() - 1
        A(f"  v_lshrrev_b32 v16, {lg_}, v0")
        A(f"  v_mul_u32_u24 v16, {gs_}, v16")
        A(f"  v_and_b32 v17, {grp_ // 16 - 1}, v0")
        A("  v_lshl_add_u32 v16, v17, 4, v16")
        A(f"  s_bfm_b64 exec, {act_}, 0" if act_ < 64 else "  s_nop 0")
        for rp in range(rep_):
            A("  s_sleep 127")
            A("  s_and_b32 s30, s35, 15")
            A(f"  s_mul_i32 s30, s30, {ws_}")
            A("  s_lshr_b32 s31, s35, 4")
            A(f"  s_mul_i32 s31, s31, {ws2_}")
            A("  s_add_u32 s30, s30, s31")
            A(f"  s_add_u32 s30, s30, {ro_[rp] << 21}")
            for k in range(n_):
                o_ = op_ if isinstance(op_, str) else op_[rp]
                f_ = fl_ if isinstance(fl_, str) else fl_[rp]
                A(f"  buffer_{o_}_dwordx4 v[20:23], v16, s[52:55], s30 offen {f_}")
                A(f"  s_add_u32 s30, s30, {ks_}")
        A("  s_mov_b64 exec, -1")
        A("  s_waitcnt vmcnt(0)")
        A("  s_sub_u32 s30, s62, 56")
        A("  s_and_b32 s30, s30, 7")
    if clr:
        for r in range(16, 20): A(f"  v_not_b32 v{r}, v15")
        A("  buffer_store_dwordx4 v[16:19], v20, s[40:43], s75 offen sc1")
        A("  s_add_u32 s75, s75, 4*8*10240")
        A("  s_mov_b32 exec_hi, 0xffff")
        A("  buffer_store_dwordx4 v[16:19], v20, s[40:43], s75 offen sc1")
        A("  s_mov_b32 exec_hi, -1")
    A("  s_cmp_eq_u32 s33, 1")
    A("  s_cbranch_scc1 L_cpre")
    A(f"  s_cmp_ge_u32 s62, {0 if 'nj' in exp else 112}")
    A(f"  s_cbranch_scc1 {'L_cpre0' if ns == 4 else 'L_jend'}")
    for _ in range(jdel): A("  s_sleep 32")
    A("  s_cmp_ge_u32 s62, 56")
    A("  s_cbranch_scc1 L_f2pre")
    FX = 144
    A("  s_cmp_ge_u32 s62, 28")
    A("  s_cselect_b32 s16, s18, s16")
    A("  s_cselect_b32 s17, s19, s17")
    A("  s_cselect_b32 s30, 28, 0")
    A("  s_sub_u32 s30, s62, s30")
    A("  s_lshl_b32 s30, s30, 7")
    srd(48, 16, 's30', 0 if 'zf' in exp else 447 * 3584 + 128)
    A("  v_mul_u32_u24 v14, 896, v11")
    A("  v_lshl_add_u32 v14, v2, 4, v14    ; (n&7)*896 + g*16")
    for r in range(16, 32, 2):
        A(f"  v_mov_b64 v[{r}:{r+1}], 0")
    for t in range(7):
        A(f"  buffer_load_dwordx4 v[{FX+4*t}:{FX+4*t+3}], v14, s[56:59], 0 offen offset:{t*64} {xflag}")
    A("  s_mov_b32 s45, 3584")
    A("  s_mov_b32 s61, 1")
    A("  s_mov_b32 s75, 0")
    A("L_lt7a:")
    A("  v_lshrrev_b32 v4, 3, v0")
    A("  v_mul_lo_u32 v4, v4, s45")
    A("  v_and_b32 v5, 7, v0")
    A("  v_lshl_add_u32 v4, v5, 4, v4      ; (l>>3)*stride + (l&7)*16")
    A("  s_lshl_b32 s45, s45, 3")
    A("  v_add_u32 v9, s46, v6")
    A("  v_lshrrev_b32 v5, 2, v3")
    A("  v_lshlrev_b32 v5, 7, v5")
    A("  v_lshl_add_u32 v5, v2, s77, v5")
    A("  v_and_b32 v10, 3, v3")
    A("  v_lshl_add_u32 v10, v10, 3, v5")
    A("  v_add_u32 v10, s46, v10           ; g*1024 + (n>>2)*128 + (n&3)*8")
    A("  v_add_u32 v8, s78, v10")
    A("L_lt7:")
    for k in range(28):
        A(f"  buffer_load_dwordx4 v[{WB+4*k}:{WB+4*k+3}], v4, s[48:51], s44 offen {wflag}")
        A("  s_add_u32 s44, s44, s45")
    for t in range(7):
        A(f"  s_waitcnt vmcnt({24-4*t}) lgkmcnt(2)")
        for k in range(4):
            r = WB + 16 * t + 4 * k
            A(f"  ds_write_b128 v9, v[{r}:{r+3}] offset:{k*1024}")
        for c in range(4):
            for hi in range(2):
                r = WB + 16 * t + 4 * c + 2 * hi
                A(f"  ds_read_b64_tr_b16 v[{r}:{r+1}], v{8 if hi else 10} offset:{c*32}")
    A("  s_waitcnt lgkmcnt(0)")
    A("  s_cmp_eq_u32 s61, 2")
    A("  s_cbranch_scc1 L_f2")
    A("L_mm7:")
    for t in range(7):
        for c in range(4):
            d = 16 + 4 * c
            a = WB + 16 * t + 4 * c
            A(f"  v_mfma_f32_16x16x32_bf16 v[{d}:{d+3}], v[{a}:{a+3}], v[{FX+4*t}:{FX+4*t+3}], v[{d}:{d+3}]")
    A("  s_nop 7")
    A("  s_cmp_eq_u32 s61, 2")
    A("  s_cbranch_scc1 L_f2post")
    A("  s_cmp_eq_u32 s75, 1")
    A("  s_cbranch_scc1 L_f1post")
    A("  s_mov_b32 s75, 1")
    for t in range(7):
        A(f"  buffer_load_dwordx4 v[{FX+4*t}:{FX+4*t+3}], v14, s[56:59], 0 offen offset:{448+t*64} {xflag}")
    A("  s_branch L_lt7")
    A("L_f1post:")
    A("  s_cmp_ge_u32 s62, 28")
    A("  s_cbranch_scc1 L_f1pub")
    for k in range(16, 32, 2):
        rnd2(k)
        A(f"  v_mul_f32 v32, 0x{f2u(-LOG2E):x}, v{k}")
        A(f"  v_mul_f32 v33, 0x{f2u(-LOG2E):x}, v{k+1}")
        A("  v_exp_f32 v32, v32")
        A("  v_exp_f32 v33, v33")
        A("  v_add_f32 v32, 1.0, v32")
        A("  v_add_f32 v33, 1.0, v33")
        A("  v_rcp_f32 v32, v32")
        A("  v_rcp_f32 v33, v33")
        A("  s_nop 0")
        A(f"  v_pk_mul_f32 v[{k}:{k+1}], v[{k}:{k+1}], v[32:33]")
    A("L_f1pub:")
    A("  v_lshlrev_b32 v14, 6, v3")
    A("  v_lshl_add_u32 v14, v2, 4, v14    ; n*64 + g*16")
    for c in range(4):
        A(f"  v_cvt_pk_bf16_f32 v{32+2*c}, v{16+4*c}, v{17+4*c}")
        A(f"  v_cvt_pk_bf16_f32 v{33+2*c}, v{18+4*c}, v{19+4*c}")
    A("  s_nop 1")
    for r in range(4):
        A(f"  v_mov_b32_dpp v{32+r}, v{36+r} quad_perm:[0,1,2,3] bank_mask:0xc")
    A("  buffer_store_dwordx4 v[32:35], v14, s[40:43], s74 offen sc1")
    A("  s_mov_b64 exec, 1")
    A("  s_waitcnt vmcnt(0)")
    A(f"  buffer_store_dword v15, v6, s[40:43], s76 offen offset:{FD_OFF} sc1")
    A("  s_mov_b64 exec, -1")
    stamp(5)
    A(f"  s_branch {'L_cpre0' if ns == 4 else 'L_jend'}")
    if clr:
        A("L_jidle:")
        A("  s_waitcnt vmcnt(0)")
        A("  s_branch L_jend")
    A("L_f2pre:")
    if clr:
        A("  buffer_store_dwordx4 v[16:19], v7, s[40:43], s72 offen sc1")
        A("  buffer_store_dwordx4 v[16:19], v7, s[40:43], s72 offen offset:128 sc1")
    A("  s_mul_i32 s36, s30, 224*896       ; ks")
    A("  s_lshl_b32 s37, s38, 7")
    A("  s_add_u32 s36, s36, s37")
    srd(48, 20, 's36', 0 if 'zf' in exp else 223 * 896 + 128)
    A("  s_mul_i32 s75, s30, 7*512")
    A(f"  s_add_u32 s75, s75, {GU_OFF}")
    A("  s_add_u32 s74, s75, 28*1024")
    A("  s_mul_i32 s76, s30, 7")
    A("  s_lshr_b32 s76, s76, 1")
    A("  s_lshl_b32 s76, s76, 7            ; first gate tile flag")
    A("  s_mov_b32 s77, 9")
    A("  s_movk_i32 s78, 2048")
    A("  s_mov_b32 s45, 896")
    A("  s_mov_b32 s61, 2")
    A("  s_branch L_lt7a")
    A("L_f2:")
    stamp(4)
    FU = 172
    A("  v_lshlrev_b32 v14, 6, v11")
    A("  v_lshl_add_u32 v14, v2, 4, v14    ; (n&7)*64 + g*16")
    A("  v_and_b32 v13, 3, v0")
    A("  v_bfe_u32 v16, v0, 2, 1")
    A("  v_mad_u32_u24 v13, v16, 28, v13")
    A("  v_lshlrev_b32 v13, 7, v13")
    wait_done("L_f2poll", FD_OFF)
    for t in range(7):
        A(f"  buffer_load_dwordx4 v[{FX+4*t}:{FX+4*t+3}], v14, s[40:43], s75 offen offset:{t*512} sc1")
        A(f"  buffer_load_dwordx4 v[{FU+4*t}:{FU+4*t+3}], v14, s[40:43], s74 offen offset:{t*512} sc1")
    A("  s_waitcnt vmcnt(0)")
    for k in range(28):
        A(f"  v_lshlrev_b32 v16, 16, v{FX+k}")
        A(f"  v_and_b32 v17, 0xffff0000, v{FX+k}")
        A(f"  v_lshlrev_b32 v18, 16, v{FU+k}")
        A(f"  v_and_b32 v19, 0xffff0000, v{FU+k}")
        A("  v_pk_mul_f32 v[16:17], v[16:17], v[18:19]")
        A(f"  v_cvt_pk_bf16_f32 v{FX+k}, v16, v17")
    for r in range(16, 32, 2):
        A(f"  v_mov_b64 v[{r}:{r+1}], 0")
    A("  s_nop 0")
    A("  s_branch L_mm7")
    A("L_f2post:")
    for c in (0, 2):
        for r in range(4):
            A(f"  v_mov_b32_dpp v{16+4*c+r}, v{20+4*c+r} quad_perm:[0,1,2,3] bank_mask:0xc")
        for r in range(4):
            A(f"  v_bfi_b32 v{16+4*c+r}, s73, v15, v{16+4*c+r}")
        A(f"  buffer_store_dwordx4 v[{16+4*c}:{19+4*c}], v7, s[40:43], s72 offen offset:{c*64} sc1")
    stamp(5)
    A(f"  s_branch {'L_cpre0' if ns == 4 else 'L_jend'}")
    if ns == 4:
        A("L_cpre0:")
        A("  s_cmp_lt_u32 s62, 32")
        A("  s_cbranch_scc1 L_jend")
        A("  s_add_u32 s62, s62, 96")
        A("  v_mov_b32 v13, 0")
    A("L_cpre:")
    if ns < 4:
        A(f"  s_cmp_ge_u32 s62, {56*ns}              ; unit")
        A("  s_cbranch_scc1 L_jend")
    A("  s_and_b32 s36, s62, 7             ; b")
    srd(48, 22, None, 896)
    A("  s_mul_i32 s44, s36, 896")
    A(f"  buffer_load_dwordx4 v[32:35], v6, s[56:59], s44 offen {xflag}")
    A(f"  buffer_load_dwordx4 v[48:51], v6, s[48:51], 0 offen {xflag}")
    A(f"  v_and_b32 v7, {LT-1}, v0")
    A("  v_lshlrev_b32 v9, 3, v7")
    A("  v_and_b32 v10, 1, v2")
    A("  v_lshl_add_u32 v9, v10, 2, v9")
    A("  v_lshrrev_b32 v10, 1, v2")
    A("  v_lshl_add_u32 v9, v10, 1, v9     ; + sigma*2")
    A(f"  v_lshrrev_b32 v4, {lgL}, v0")
    A("  v_lshlrev_b32 v7, 4, v7")
    A("  v_lshl_add_u32 v7, v4, 8, v7      ; tile*256 + j*16")
    A(f"  v_and_b32 v10, {NL-1}, v0")
    A(f"  v_lshl_add_u32 v10, v10, {lgT}, v4")
    A(f"  v_lshlrev_b32 v10, {lgm}, v10        ; (m,l) record")
    A("  s_lshr_b32 s37, s62, 3            ; piece")
    A(f"  s_lshl_b32 s45, s37, {7 - (ns.bit_length()-1)}")
    A("  s_add_u32 s45, s44, s45")
    srd(52, 24, None, 7168)
    A(f"  s_lshr_b32 s46, s37, {ns.bit_length()-1}")
    A("  s_lshl3_add_u32 s46, s46, s36")
    A("  s_mul_i32 s46, s46, 10240")
    A(f"  s_and_b32 s37, s37, {ns-1}")
    A(f"  s_lshl_b32 s37, s37, {8 - (ns.bit_length()-1)}")
    A("  s_add_u32 s46, s46, s37")
    A(f"  s_add_u32 s46, s46, {YS_OFF}")
    A("  v_mov_b32 v14, 0")
    A("  v_mov_b32 v8, s60")
    A("  v_cmp_gt_u32 vcc, 56, v0")
    A("  s_waitcnt vmcnt(0)")
    A("  s_add_u32 s48, s46, 4096")
    A("  s_add_u32 s49, s46, 8192")
    A("  s_lshl_b32 s58, s36, 12")
    A(f"  s_add_u32 s58, s58, {MLS_OFF}")
    for k in range(4):
        A(f"  v_lshlrev_b32 v16, 16, v{32+k}")
        A(f"  v_and_b32 v17, 0xffff0000, v{32+k}")
        A(f"  v_lshlrev_b32 v18, 16, v{48+k}")
        A(f"  v_and_b32 v19, 0xffff0000, v{48+k}")
        A("  v_pk_mul_f32 v[16:17], v[16:17], v[18:19]")
        rnd2(16)
        A("  v_add_f32 v14, v14, v16")
        A("  v_add_f32 v14, v14, v17")
    A("  v_cndmask_b32 v14, 0, v14, vcc")
    for sh in (1, 2, 4, 8):
        A("  s_nop 1")
        A(f"  v_add_f32_dpp v14, v14, v14 row_ror:{sh}")
    for op in ("v_permlane16_swap_b32", "v_permlane32_swap_b32"):
        A("  v_mov_b32 v12, v14")
        A("  s_nop 1")
        A(f"  {op} v14, v12")
        A("  v_add_f32 v14, v14, v12")
    rnd1(14)
    A(f"  v_mul_f32 v14, 0x{f2u(-LOG2E):x}, v14")
    A("  v_exp_f32 v14, v14")
    A("  s_nop 0")
    A("  v_add_f32 v14, 1.0, v14")
    A("  v_rcp_f32 v14, v14")
    A("  s_nop 0")
    rnd1(14)
    A("  v_sub_f32 v12, 1.0, v14")
    rnd1(12)

    def xsum(a, nop=True):
        if nop: A("  s_nop 1")
        A(f"  v_permlane32_swap_b32 v{a}, v{a+1}")
        A(f"  v_permlane32_swap_b32 v{a+2}, v{a+3}")
        A(f"  v_add_f32 v{a}, v{a}, v{a+1}")
        A(f"  v_add_f32 v{a+2}, v{a+2}, v{a+3}")
        A("  s_nop 1")
        A(f"  v_permlane16_swap_b32 v{a}, v{a+2}")
        A(f"  v_add_f32 v{a}, v{a}, v{a+2}")
        for sh in (8, 4)[:ns.bit_length()-1]:
            A("  s_nop 1")
            A(f"  v_add_f32_dpp v{a}, v{a}, v{a} row_ror:{sh}")

    def tagchk(r, sd, t0, t1):
        A(f"  v_bitop3_b32 v{t0}, v{r}, v{r+1}, v8 bitop3:0x7e")
        A(f"  v_bitop3_b32 v{t1}, v{r+2}, v{r+3}, v8 bitop3:0x7e")
        A(f"  v_bitop3_b32 v{t0}, v{t0}, s73, v{t1} bitop3:0xc8")
        A(f"  v_cmp_ne_u32 {sd}, 0, v{t0}")
    A("L_cw:")
    A("  s_sleep 32")
    A(f"  ds_read_b32 v16, v13 offset:{TK}")
    A("  s_waitcnt lgkmcnt(0)")
    A("  v_readfirstlane_b32 s30, v16")
    A(f"  s_cmp_lt_u32 s30, {cwait}")
    A("  s_cbranch_scc1 L_cw")
    A("  s_mov_b32 s47, 0")
    if ns == 4:
        A("  v_mov_b64 v[32:33], 0")
        A("  v_mov_b64 v[34:35], 0")
        A("  s_mov_b32 exec_hi, 0")
    A("L_cd:")
    A("  buffer_load_dwordx4 v[32:35], v7, s[40:43], s49 offen sc1")
    if ns == 1: A("  buffer_load_dwordx4 v[36:39], v7, s[40:43], s49 offen offset:1024 sc1")
    A("  s_waitcnt vmcnt(0)")
    tagchk(32, "vcc", 16, 17)
    if ns == 1:
        tagchk(36, "s[64:65]", 18, 19)
        A("  s_or_b64 vcc, vcc, s[64:65]")
        A("  s_cbranch_scc0 L_cf2")
    else:
        A("  s_cbranch_vccz L_cf2")
    A(f"  s_sleep {fsleep}")
    A("  s_add_u32 s47, s47, 1")
    A(f"  s_cmp_lt_u32 s47, {0 if 'nj' in exp else BOUND}")
    A("  s_cbranch_scc1 L_cd")
    A("L_cf2:")
    if ns == 4: A("  s_mov_b32 exec_hi, -1")
    if ns == 1:
        A("  v_pk_add_f32 v[32:33], v[32:33], v[36:37]")
        A("  v_pk_add_f32 v[34:35], v[34:35], v[38:39]")
    xsum(32)
    rnd1(32)
    A("  v_mul_f32 v12, v12, v32")
    rnd1(12)
    CM = [f"s[{64+2*k}:{65+2*k}]" for k in range(4)] + [f"s[{4+2*k}:{5+2*k}]" for k in range(4)]
    for k in range(NL):
        A(f"  s_mov_b64 {CM[k]}, -1")
    A("  s_mov_b64 s[56:57], -1")
    for k in list(range(4*NL)) + [33, 35]:
        A(f"  v_not_b32 v{32+k}, v8")
    if ns > 1:
        A(f"  s_mov_b32 s50, {hex(((1 << LT) - 1) * 0x10001)}")
        A("  s_mov_b32 s51, s50")
    A("  s_mov_b32 s63, 1")
    stamp(5)
    def cload():
        for k in range(NL):
            A(f"  s_mov_b64 exec, {CM[k]}")
            o = k * 1024 * ns
            A(f"  buffer_load_dwordx4 v[{32+4*k}:{35+4*k}], v7, s[40:43], s{46 if o < 4096 else 48} offen offset:{o % 4096} sc1")
        A("  s_mov_b64 exec, -1")
    def mload():
        A("  s_mov_b64 exec, s[56:57]")
        A("  buffer_load_dwordx4 v[64:67], v10, s[40:43], s58 offen sc1")
    if cpre:
        A("L_cw2:")
        A("  s_sleep 8")
        A(f"  ds_read_b32 v16, v13 offset:{TK}")
        A("  s_waitcnt lgkmcnt(0)")
        A("  v_readfirstlane_b32 s30, v16")
        A(f"  s_cmp_lt_u32 s30, {cpre}")
        A("  s_cbranch_scc1 L_cw2")
        if cdel: A(f"  s_sleep {cdel}")
        if cpl:
            mload()
            cload()
    A("L_jend:")
    A("  v_mov_b32 v13, 0")
    A("  v_mov_b32 v17, s60")
    A("  v_mov_b32 v19, s60")
    A(f"  s_mov_b32 s47, {-CB}")
    if pb: A("  s_cmp_eq_u32 s63, 0")
    A("  s_barrier")
    stamp(6)
    A(f"  ds_read_b128 v[24:27], v13 offset:{ML}")
    A(f"  ds_read_b128 v[28:31], v13 offset:{ML+16}")
    if pb:
        A("  s_cbranch_scc1 L_npb")
        mload()
        cload()
        A("L_npb:")
    A("  s_waitcnt lgkmcnt(0)")
    def efac(vm, vn):
        A(f"  v_max3_f32 v{vm}, v24, v26, v28")
        A(f"  v_max_f32 v{vm}, v{vm}, v30")
        A(f"  v_mul_f32 v{vn}, 0x{f2u(-CSC):x}, v{vm}")
        for w in range(4):
            A(f"  v_fmamk_f32 v{24+2*w}, v{24+2*w}, 0x{f2u(CSC):x}, v{vn}")
        for w in range(4):
            A(f"  v_exp_f32 v{24+2*w}, v{24+2*w}")
    efac(16, 18)
    A("  v_mul_f32 v18, v24, v25")
    for w in range(1, 4):
        A(f"  v_fmac_f32 v18, v{24+2*w}, v{25+2*w}")
    A("  s_mov_b64 exec, 1")
    A("  buffer_store_dwordx4 v[16:19], v13, s[40:43], s79 offen sc1")
    A("  s_cmp_eq_u32 s63, 0")
    A("  s_cbranch_scc1 L_endw")
    A("  s_mov_b64 exec, -1")
    if pb == 2: A("  s_waitcnt vmcnt(1)")
    def again(lab, okl, ml):
        A(f"  s_bcnt1_i32_b64 s30, {CM[0]}")
        for k in range(1, NL):
            A(f"  s_bcnt1_i32_b64 s31, {CM[k]}")
            A("  s_add_u32 s30, s30, s31")
        A("  s_add_u32 s47, s47, 1")
        A(f"  s_cbranch_scc1 {okl}")
        A(f"  s_cmp_gt_u32 s30, {cthr}")
        A(f"  s_cbranch_scc1 {lab}s")
        if ml and mlr > 1:
            A(f"  s_and_b32 s31, s47, {mlr-1}")
            A("  s_cselect_b64 exec, 0, s[56:57]")
            A("  buffer_load_dwordx4 v[64:67], v10, s[40:43], s58 offen sc1")
        elif ml: mload()
        cload()
        A(f"  s_waitcnt vmcnt({(NL+ml)*(cdep-1)})")
        A(f"  s_branch {lab}")
        A(f"{lab}s:")
        A(f"  s_cmp_le_u32 s30, {cthr2}")
        A(f"  s_cbranch_scc1 {lab}a")
        if csleep: A(f"  s_sleep {csleep}")
        A(f"{lab}a:")
        if ml: mload()
        cload()
        if cdb > 1:
            A(f"  s_waitcnt vmcnt({(NL+ml)*(cdb-1)})")
            A(f"  s_cbranch_scc1 {lab}")
        A("  s_waitcnt vmcnt(0)")
        A(f"  s_branch {lab}")
    A("L_c1:")
    A("  v_bitop3_b32 v76, v65, v67, v8 bitop3:0x7e")
    A("  v_cmp_ne_u32 s[56:57], 0, v76")
    for k in range(NL):
        tagchk(32 + 4 * k, CM[k], 76, 77)
    A("  s_cmp_eq_u64 s[56:57], 0")
    A("  s_cbranch_scc1 L_c1x")
    again("L_c1", "L_c1x", 1)
    A("L_c1x:")
    stamp(1)
    cload()
    A(f"  s_or_b32 s47, s47, {-CB}")
    A("  v_mov_b32_dpp v77, v66 quad_perm:[1,0,3,2]")
    A("  v_mov_b32_dpp v76, v64 quad_perm:[1,0,3,2]")
    A("  v_max_f32 v78, v64, v76")
    A(f"  v_mul_f32 v78, 0x{f2u(-CSC):x}, v78")
    A(f"  v_fmamk_f32 v79, v64, 0x{f2u(CSC):x}, v78")
    A(f"  v_fmamk_f32 v76, v76, 0x{f2u(CSC):x}, v78")
    A("  v_exp_f32 v79, v79")
    A("  v_exp_f32 v76, v76")
    A("  v_mul_f32 v78, v79, v66")
    A("  v_fmac_f32 v78, v76, v77")
    A("  v_rcp_f32 v78, v78")
    A("  s_nop 0")
    A("  v_mul_f32 v78, v78, v79")
    A("  s_nop 1")
    for k in range(NL):
        A(f"  v_mov_b32_dpp v{68+k}, v78 " + (f"row_newbcast:{k}" if ns == 1 else f"quad_perm:[{k},{k},{k},{k}]"))
    A("L_c2:")
    for k in range(NL):
        tagchk(32 + 4 * k, CM[k], 76, 77)
        d = 16 + 4 * (k & 1) if ns == 1 else 16
        f = 68 + (k & 6)
        for r in (0, 2):
            s = 32 + 4 * k + r
            if k < (2 if ns == 1 else 1):
                A(f"  v_pk_mul_f32 v[{d+r}:{d+r+1}], v[{s}:{s+1}], v[{f}:{f+1}] op_sel:[0,{k&1}] op_sel_hi:[1,{k&1}]")
            else:
                A(f"  v_pk_fma_f32 v[{d+r}:{d+r+1}], v[{s}:{s+1}], v[{f}:{f+1}], v[{d+r}:{d+r+1}] op_sel:[0,{k&1},0] op_sel_hi:[1,{k&1},1]")
        if k == 1: A(f"  s_or_b64 s[30:31], {CM[0]}, {CM[1]}")
        elif k > 1: A(f"  s_or_b64 s[30:31], s[30:31], {CM[k]}")
    A("  s_cbranch_scc1 L_cretry")
    A("L_cok:")
    stamp(2)
    if ns == 1:
        for r in (0, 2):
            A(f"  v_pk_add_f32 v[{16+r}:{17+r}], v[{16+r}:{17+r}], v[{20+r}:{21+r}]")
    xsum(16, ns == 1 or debug)
    rnd1(16)
    A("  v_mul_f32 v16, v14, v16")
    rnd1(16)
    A("  v_add_f32 v16, v16, v12")
    A("  v_cvt_pk_bf16_f32 v16, v16, v16")
    if ns > 1: A("  s_mov_b64 exec, s[50:51]")
    A(f"  buffer_store_short v16, v9, s[52:55], s45 offen {outf}".rstrip())
    stamp(7)
    A("  s_cmp_lg_u32 s62, 0")
    A("  s_cbranch_scc1 L_endw")
    A("  s_mov_b64 exec, 1")
    A(f"  buffer_store_dword v8, v6, s[40:43], 0 offen offset:{EP_OFF} sc1")
    A("L_endw:")
    end()
    A("L_cretry:")
    again("L_c2", "L_cok", 0)

    RB = 32
    vSa, vSb, vS, vT, vN0, vN1, vAl, vP, vPk, vL, vC, vNegC = range(224, 236)
    assert RB + 4 * depth <= 224
    vTk, vOne = 248, 250
    Q = 24
    A(".p2align 6")
    A("L_stream:")
    assert sorted(pm) == list(range(9, 21))
    if pm[1] == pm[0] + 1:
        A(f"  v_lshlrev_b32 v4, {pm[0]}, v2")
    else:
        A("  v_and_b32 v4, 1, v2")
        A(f"  v_lshlrev_b32 v4, {pm[0]}, v4")
        A("  v_lshrrev_b32 v8, 1, v2")
        A(f"  v_lshl_add_u32 v4, v8, {pm[1]}, v4")
    A("  v_lshl_add_u32 v4, v3, 4, v4      ; voffset")
    A("  s_lshl4_add_u32 s36, s32, s34     ; bh")
    A("  s_lshl_b32 s36, s36, 21")
    A(f"  s_mov_b32 s45, {2<<20}")
    A(f"  s_lshl_b32 s65, s33, {pm[3]}")
    for (sb, db) in xm:
        assert db in pm[3:4] + pm[5:]
        A(f"  s_bfe_u32 s64, s36, {hex(0x10000 | sb)}")
        A(f"  s_lshl_b32 s64, s64, {db}")
        A("  s_xor_b32 s65, s65, s64")
    GO = [0, 1 << pm[2], 1 << pm[4], (1 << pm[2]) + (1 << pm[4])]
    hi = sorted(set(o & ~0xfff for o in GO))
    SR = dict(zip(hi, ['s44', 's67', 's75', 's76']))
    def addr(t, sel=True):
        tp = pm[5:]
        runs = []
        for k in range(7):
            if runs and tp[k] == tp[k-1] + 1: runs[-1][1] += 1
            else: runs.append([k, 1])
        for n, (k, ln) in enumerate(runs):
            A(f"  s_bfe_u32 s64, {t}, {hex((ln << 16) | k)}")
            A(f"  s_lshl_b32 s64, s64, {tp[k]}")
            A(f"  s_xor_b32 s44, s64, {'s65' if n == 0 else 's44'}")
        for o in hi[1:]: A(f"  s_add_u32 {SR[o]}, s44, {o}")
        if sel:
            A(f"  s_bitcmp1_b32 {t}, 7")
            A("  s_cselect_b64 s[48:49], s[52:53], s[54:55]")
    A("  s_mov_b32 s66, s38")
    addr('s66', False)
    if 'st' in exp: stamp(7)
    A("  s_waitcnt lgkmcnt(0)")
    if 'st' in exp: stamp(5)
    srd(48, 6, 's36', 's45')

    def reg(slot, i): return RB + (slot * 8 + i) * 4
    def ld0(slot, i):
        r = reg(slot, i); o = GO[i >> 1]
        A(f"  buffer_load_dwordx4 v[{r}:{r+3}], v4, s[48:51], {SR[o & ~0xfff]} offen offset:{(o & 0xfff) + 256 * (i & 1)} {kflag}")
    if 'st' in exp: stamp(6)
    for s in range(ring):
        for i in range(8):
            if s * 8 + i == b1:
                A("  s_barrier")
                if 'k0' in exp: stamp(6)
            ld0(s, i)
        if s < ring - 1:
            A("  s_add_u32 s66, s66, 4")
            addr('s66', False)
        if 'st' in exp and s == 0:
            if 'sw' in exp: A("  s_waitcnt vmcnt(7)")
            stamp(2)
    stamp(1)
    A("  s_mov_b64 s[54:55], s[48:49]")
    A("  s_add_u32 s52, s8, s36")
    A("  s_addc_u32 s53, s9, 0")
    A("  s_and_b32 s53, s53, 0xffff")
    srd(40, 28, hex(wsb << 20) if wsb else None, WS_N)
    A("  s_mul_i32 s30, s38, 8*10240")
    A("  s_add_u32 s72, s72, s30")
    A("  s_lshl_b32 s30, s38, 11")
    A(f"  s_add_u32 s30, s30, {SC}")
    A("  v_lshlrev_b32 v8, 4, v0")
    A("  v_add_u32 v8, s30, v8")
    A("  v_mov_b64 v[12:13], -1")
    A("  v_mov_b64 v[14:15], -1")
    A("  ds_write_b128 v8, v[12:15]")
    A("  ds_write_b128 v8, v[12:15] offset:1024")
    A("  s_lshl_b32 s79, s38, 6")
    A(f"  s_add_u32 s79, s79, {SC - 8192}")
    A("  v_and_b32 v8, 1, v0")
    A("  v_lshlrev_b32 v8, 4, v8")
    A("  v_mov_b32 v9, 0xffff")
    A("  v_lshlrev_b32 v1, v8, v9")
    A("  v_and_b32 v8, 2, v0")
    A("  v_cmp_eq_u32 vcc, 0, v8")
    A("  s_nop 1")
    A("  v_cndmask_b32 v1, 0, v1, vcc")
    A("  v_and_b32 v8, 1, v2")
    A(f"  v_mul_u32_u24 v6, {PP}, v8")
    A("  v_lshl_add_u32 v6, v3, 3, v6")
    A("  v_lshrrev_b32 v8, 1, v2")
    A("  v_lshl_add_u32 v6, v8, 2, v6            ; (g&1)*PP + j*8 + (g>>1)*4")
    A(f"  s_mul_i32 s30, s38, {PS}")
    A(f"  s_add_u32 s30, s30, {OP}")
    A("  v_add_u32 v6, s30, v6")
    A(f"  v_lshlrev_b32 v{vSa}, 4, v3                 ; j*16")
    A("  s_waitcnt lgkmcnt(0)")
    for r in range(8, 24, 2):
        A(f"  v_mov_b64 v[{r}:{r+1}], 0")
    A(f"  v_mov_b32 v{vL}, 0")
    A(f"  v_mov_b32 v{vN0}, 0x{f2u(1e30):x}")
    A(f"  v_mov_b32 v{vN1}, v{vN0}")
    A(f"  v_mov_b32 v{vC}, 0x{f2u(CSC):x}")
    A(f"  v_mov_b32 v{vNegC}, 0x{f2u(-CSC):x}")
    A("  s_mov_b32 s61, 0xff7fffff")
    A(f"  s_mov_b32 s46, {lring}")
    A(f"  s_movk_i32 s71, {tw}")
    if xfo is not None:
        A("  s_and_b32 s74, s2, 7")
        A(f"  s_bitcmp1_b32 {hex(om)}, s74")
        A(f"  s_cselect_b32 s74, {xfo}, {xf}")
    A(f"  v_mov_b32 v{vOne}, 1")
    A(f"  v_mov_b32 v{vOne+1}, 0")
    A("  s_lshl_b32 s30, s38, 3")
    A("  v_mov_b32 v2, s30                       ; w*8")
    tail_setup()
    if 'tl' in exp:
        A("  s_lshl_b32 s98, s38, 9")
        A(f"  s_add_u32 s98, s98, {LDS_SIZE}")
        A(f"  v_lshlrev_b32 v{vSb}, 3, v0")
        A(f"  v_add_u32 v{vSb}, s98, v{vSb}")
        A(f"  ds_write_b64 v{vSb}, v[8:9]")
    A("  s_barrier")
    stamp(3)
    if 'tl' in exp: A("  s_memrealtime s[96:97]")
    A(f"  ds_read_b128 v[{Q}:{Q+3}], v{vSa} offset:{QL}")
    A(f"  ds_read_b128 v[{Q+4}:{Q+7}], v{vSa} offset:{QL+256}")
    A(f"  ds_read_b32 v{vS}, v{vOne+1} offset:{TAG}")
    def ticket():
        A("  s_mov_b64 exec, 1")
        A(f"  ds_add_rtn_u64 v[{vTk}:{vTk+1}], v{vOne+1}, v[{vOne}:{vOne+1}] offset:{TK}")
        A("  s_mov_b64 exec, -1")
    ticket()
    A("  s_waitcnt lgkmcnt(0)")
    A(f"  v_readfirstlane_b32 s60, v{vS}")
    lr = lring
    def thr_(lab, LV):
        n = len(LV)
        for k in range(n, 0, -1):
            A(f"  s_cmp_ge_u32 s68, {k}")
            A(f"  s_cbranch_scc1 {lab}_{k}")
        for k in range(n):
            A(f"  s_waitcnt vmcnt({LV[k]})")
            A(f"{lab}_{k+1}:")
    def itst(ty):
        if debug and 'st' not in exp and 'tt' not in exp:
            for it, k in (((18-lr)//lr, 2), ((36-lr)//lr, 5), ((54-lr)//lr, 6)):
                A(f"  s_cmp_lg_u32 s47, {it}")
                A(f"  s_cbranch_scc1 L_ns{ty}{k}")
                stamp(k)
                A(f"L_ns{ty}{k}:")
            A("  s_add_u32 s47, s47, 1")
    def body(s, mode, ty, W):
        nOld, nNew = (vN1, vN0) if s % 2 == 0 else (vN0, vN1)
        sX = f"s{77+s}" if mode == 'loop' else 's79'
        lv = LV if ty == 'k' or LVv is None else LVv
        W = [W]
        def wt():
            A(f"  s_waitcnt vmcnt({W[0]})")
            if mode == 'drain': W[0] -= 2
        def ld(i):
            if mode != 'drain': ld0(s, i)
        if mode == 'loop':
            A(f"L_{ty}{s}:")
            if ty == 'k':
                A(f"  s_cmp_ge_u32 {sX}, {SC}")
                A(f"  s_cbranch_scc1 L_tr{s}")
            if s == 0: itst(ty)
        if ty == 'k': A(f"  v_and_or_b32 v{vAl}, v0, 60, {sX}")
        if mode != 'drain':
            A("  s_waitcnt lgkmcnt(0)")
            A(f"  v_readfirstlane_b32 s30, v{vTk}")
            A(f"  v_readfirstlane_b32 s31, v{vTk+1}")
        if ty == 'v':
            A(f"  v_cmp_ne_u16 vcc, 0, v{vS}")
            A(f"  s_cbranch_vccnz L_rt{s}")
        if 'tl' in exp:
            A("  s_waitcnt lgkmcnt(0)")
            A(f"  v_mov_b32 v{vSa}, s96")
            A(f"  v_mov_b32 v{vSb}, s98")
            A(f"  ds_write_b32 v{vSb}, v{vSa}")
            A("  s_add_u32 s98, s98, 4")
        if mode == 'loop' and s == 0 and ty == 'v':
            A("  s_cmp_ge_u32 s30, s71")
            A("  s_cbranch_scc1 L_wld")
            A("L_wldx:")
        if ty == 'k':
            A(f"  v_mov_b32 v{vSa}, 0")
            A(f"  v_mov_b32 v{vSb}, 0")
        if mode == 'loop':
            A("  s_lshr_b32 s70, s31, 16")
            A("  s_and_b32 s31, s31, 0xffff")
            A("  s_cmp_lt_u32 s30, s70")
            A("  s_cselect_b32 s68, 1, 0")
            if xf2 is not None: A(f"  s_cselect_b32 s64, {xf}, {xf2}")
            if len(LV) == 4:
                A("  s_sub_u32 s69, s70, s30")
                A(f"  s_sub_u32 s69, s69, {d3+1}")
                A("  s_cmp_lt_u32 s69, 64")
                A("  s_addc_u32 s68, s68, 0")
            if len(LV) >= 3:
                A(f"  s_add_u32 s70, s70, {d2}")
                A("  s_cmp_lt_u32 s30, s70")
                A("  s_addc_u32 s68, s68, 0")
            A(f"  s_add_u32 s69, s30, {'s74' if xfo is not None else xf if xf2 is None else 's64'}")
            A("  s_cmp_ge_u32 s69, s31")
            A(f"  s_cselect_b32 s68, {len(LV)}, s68")
            if debug:
                A(f"  s_cmp_lt_u32 s68, 2")
                A("  s_cselect_b32 s69, 1, 0")
                A("  s_add_u32 s101, s101, s69")
            A("  s_cmp_lt_u32 s30, s31")
            A(f"  s_cbranch_scc0 L_fin{ty}{s}")
        if mode != 'drain':
            addr('s30', ty == 'k')
            A(f"  s_lshl_b32 s{77+s}, s30, 6")
            A(f"  s_add_u32 s{77+s}, s{77+s}, {SC - 8192}")
            ticket()
        if mode == 'loop': A(f"L_go{ty}{s}:")
        if ty == 'k':
            for hf in range(2):
                if mode == 'loop': thr_(f"L_t{ty}{s}{hf}", lv)
                for gi, acc in ((0, vSa), (1, vSb)):
                    i0 = 4 * hf + 2 * gi
                    wt()
                    if 'tl' in exp and i0 == 6: A("  s_memrealtime s[96:97]")
                    for i in range(2):
                        for e in range(4 if 'nd' not in exp else 1):
                            A(f"  v_dot2c_f32_bf16 v{acc}, v{reg(s,i0+i)+e}, v{Q + i*4 + e}")
                    ld(i0); ld(i0 + 1)
                if mode == 'drain': A("  s_nop 1")
                d = vT if hf else vS
                A(f"  v_add_f32_dpp v{d}, v{vSa}, v{vSa} row_ror:8 bank_mask:0x3")
                A(f"  v_add_f32_dpp v{d}, v{vSb}, v{vSb} row_ror:8 bank_mask:0xc")
                if hf == 0:
                    A(f"  v_mov_b32 v{vSa}, 0")
                    A(f"  v_mov_b32 v{vSb}, 0")
                    A(f"  v_add_f32_dpp v{vS}, v{vS}, v{vS} row_half_mirror bank_mask:0x5")
            A("  s_nop 1")
            A(f"  v_add_f32_dpp v{vS}, v{vT}, v{vT} row_half_mirror bank_mask:0xa")
            A("  s_nop 1")
            A(f"  v_add_f32_dpp v{vS}, v{vS}, v{vS} quad_perm:[1,0,3,2]")
            A("  s_nop 1")
            A(f"  v_add_f32_dpp v{vS}, v{vS}, v{vS} quad_perm:[2,3,0,1]")
            A(f"  v_cvt_pk_bf16_f32 v{vS}, v{vOne+1}, v{vS}")
            A(f"  ds_write_b32 v{vAl}, v{vS} offset:{8192 + (0 if mode == 'loop' else 256 * s)}")
        else:
            A(f"  v_max_f32_dpp v{vT}, v{vS}, v{vS} row_ror:8")
            A("  s_nop 1")
            A(f"  v_max_f32_dpp v{vT}, v{vT}, v{vT} row_ror:4")
            A(f"  v_max_f32 v{vT}, s61, v{vT}")
            A("  s_nop 1")
            A(f"  v_max_f32_dpp v{vT}, v{vT}, v{vT} row_bcast:15 row_mask:0xa")
            A("  s_nop 1")
            A(f"  v_max_f32_dpp v{vT}, v{vT}, v{vT} row_bcast:31 row_mask:0xc")
            A("  s_nop 0")
            A(f"  v_readlane_b32 s61, v{vT}, 63")
            A(f"  v_and_or_b32 v{vT}, v0, 60, s{77+(s+1)%lr}")
            A("  s_nop 0")
            A(f"  v_mul_f32 v{nNew}, s61, v{vNegC}")
            A(f"  v_sub_f32 v{vAl}, v{nNew}, v{nOld}")
            A(f"  v_fma_f32 v{vP}, v{vS}, v{vC}, v{nNew}")
            A(f"  ds_read_b32 v{vS}, v{vT}")
            A(f"  v_exp_f32 v{vAl}, v{vAl}")
            A(f"  v_exp_f32 v{vP}, v{vP}")
            A(f"  v_mul_f32 v16, v{vAl}, v16")
            A(f"  v_cvt_pk_bf16_f32 v{vPk}, v{vP}, v{vP}")
            A(f"  v_mul_f32 v17, v{vAl}, v17")
            A(f"  v_mul_f32 v20, v{vAl}, v20")
            AO = (8, 12, 24, 28)
            for gi, bc in enumerate((0, 8, 4, 12)):
                for r in range(4):
                    A(f"  v_and_b32_dpp v{AO[gi]+r}, v{vPk}, v1 row_newbcast:{bc} bank_mask:0x{1<<r:x}")
                if gi == 0:
                    A(f"  v_mul_f32 v21, v{vAl}, v21")
                    A(f"  v_fma_f32 v{vL}, v{vL}, v{vAl}, v{vP}")
            for gi in range(4):
                if gi % 2 == 0: thr_(f"L_t{ty}{s}{gi}", lv)
                wt()
                if 'tl' in exp and gi == 3: A("  s_memrealtime s[96:97]")
                a = AO[gi]
                A(f"  v_mfma_f32_16x16x32_bf16 v[16:19], v[{a}:{a+3}], v[{reg(s,2*gi)}:{reg(s,2*gi)+3}], v[16:19]")
                A(f"  v_mfma_f32_16x16x32_bf16 v[20:23], v[{a}:{a+3}], v[{reg(s,2*gi+1)}:{reg(s,2*gi+1)+3}], v[20:23]")
                ld(2 * gi); ld(2 * gi + 1)
        if mode == 'loop':
            A("  s_cmp_eq_u32 s46, 0")
            A("  s_cbranch_scc1 L_sdone")
    for s in range(ring):
        body(s, 'first' if s < lr else 'drain', 'k', depth - 2 - 8 * max(0, s - lr))
    for ty in 'kv':
        for s in range(lr):
            body(s, 'loop', ty, lr * 8 - 2)
        A(f"  s_branch L_{ty}0")
    for s in range(lr):
        for ty in 'kv':
            A(f"L_fin{ty}{s}:")
            for o in hi: A(f"  s_mov_b32 {SR[o]}, s45")
            A(f"  s_mov_b32 s68, {len(LV)}")
            A("  s_sub_u32 s46, s46, 1")
            A(f"  s_branch L_go{ty}{s}")
        A(f"L_tr{s}:")
        for r in range(Q, Q + 8, 2): A(f"  v_mov_b64 v[{r}:{r+1}], 0")
        A(f"L_rt{s}:")
        A(f"  v_and_or_b32 v{vT}, v0, 60, s{77+s}")
        A(f"  ds_read_b32 v{vS}, v{vT}")
        A(f"  s_branch L_v{s}")
    A("L_wld:")
    for j in range(1, wsp):
        A(f"  s_cmp_eq_u32 s71, {tw + j*wst}")
        A(f"  s_cbranch_scc1 L_wld{j}")
    A("L_wld0:")
    A(f"  ds_read_b32 v{vSa}, v{vOne+1} offset:{WF}")
    A("  s_waitcnt lgkmcnt(0)")
    A(f"  v_readfirstlane_b32 s71, v{vSa}")
    A("  s_cmp_lt_u32 s71, 2")
    A("  s_cbranch_scc1 L_wld0")
    for j in range(wsp):
        if j: A(f"L_wld{j}:")
        A("  s_lshl_b32 s71, s38, 15")
        A(f"  s_add_u32 s71, s71, {STG}")
        traddr(vSb, vT, 's71')
        for t in range(8*j//wsp, 8*(j+1)//wsp):
            for c in range(4):
                for hi in range(2):
                    r = woreg(t, c, hi)
                    A(f"  ds_read_b64_tr_b16 v[{r}:{r+1}], v{vSb} offset:{t*4096+hi*512+c*32}")
        if j < wsp - 1: A(f"  s_movk_i32 s71, {tw + (j+1)*wst}")
        else: A("  s_mov_b32 s71, -1")
        A("  s_branch L_wldx")
    if wsp > 1:
        A("L_wfix:")
        A(f"  ds_read_b32 v{vSa}, v{vOne+1} offset:{WF}")
        A("  s_waitcnt lgkmcnt(0)")
        A(f"  v_readfirstlane_b32 s71, v{vSa}")
        A("  s_cmp_lt_u32 s71, 2")
        A("  s_cbranch_scc1 L_wfix")
        A("  s_lshl_b32 s71, s38, 15")
        A(f"  s_add_u32 s71, s71, {STG}")
        traddr(vSb, vT, 's71')
        for t in range(8):
            for c in range(4):
                for hi in range(2):
                    r = woreg(t, c, hi)
                    A(f"  ds_read_b64_tr_b16 v[{r}:{r+1}], v{vSb} offset:{t*4096+hi*512+c*32}")
        A("  s_mov_b32 s71, -1")
        A("  s_waitcnt lgkmcnt(0)")
    A("L_sdone:")
    if wsp > 1:
        A("  s_cmp_lg_u32 s71, -1")
        A("  s_cbranch_scc1 L_wfix")
    stamp(4)
    if tprio: A(f"  s_setprio {tprio}")
    A("  s_waitcnt lgkmcnt(0)")
    A(f"  v_add_f32_dpp v{vL}, v{vL}, v{vL} row_ror:8")
    A(f"  v_mov_b32 v{vS}, s61")
    A("  s_nop 0")
    A(f"  v_add_f32_dpp v{vL}, v{vL}, v{vL} row_ror:4")
    A("  s_nop 1")
    A(f"  v_add_f32_dpp v{vL}, v{vL}, v{vL} row_bcast:15 row_mask:0xa")
    A("  v_cvt_pk_bf16_f32 v16, v16, v17")
    A("  v_cvt_pk_bf16_f32 v20, v20, v21")
    A(f"  v_add_f32_dpp v{vT}, v{vL}, v{vL} row_bcast:31 row_mask:0xc")
    assert vT == vS + 1 and vS % 2 == 0
    A("  ds_write2_b32 v6, v16, v20 offset0:0 offset1:32")
    A("  s_lshl_b64 exec, exec, 63")
    A(f"  ds_write_b64 v2, v[{vS}:{vT}] offset:{ML}")
    A("  s_mov_b64 exec, -1")
    A("  s_waitcnt lgkmcnt(0)")
    if 'tt' in exp: stamp(1)
    A("L_tail:")
    A("  s_barrier")
    if 'tt' in exp: stamp(2)
    def ard(u): A(f"  ds_read_b128 v[{8+4*u}:{11+4*u}], v3 offset:{OP+64*u}")
    ard(0); ard(1)
    A(f"  ds_read_b128 v[24:27], v255 offset:{ML}")
    A(f"  ds_read_b128 v[28:31], v255 offset:{ML+16}")
    ard(2); ard(3)
    def sm(u, c):
        d = DR[c]; w = WO + 32 * u + 8 * c
        A(f"  v_smfmac_f32_16x16x64_bf16 v[{d}:{d+3}], v[{8+4*u}:{11+4*u}], v[{w}:{w+7}], v5")
    A("  v_mov_b32 v6, s60")
    A(f"  s_movk_i32 s73, {hex((1 << tb) - 1)}")
    A("  s_waitcnt lgkmcnt(5)")
    if 'tt' in exp: stamp(5)
    for c in range(4): sm(0, c)
    A("  s_waitcnt lgkmcnt(4)")
    for c in range(4): sm(1, c)
    A("  s_waitcnt lgkmcnt(1)")
    n0 = len(L)
    efac(1, 2)
    ev = L[n0:]; del L[n0:]
    for c in range(4):
        sm(2, c)
        for x in ev[2*c:2*c+2]: A(x)
    A("  s_waitcnt lgkmcnt(0)")
    for k, c in enumerate((0, 2, 1, 3)):
        sm(3, c)
        if k < 3: A(ev[8+k])
    if tp2 is not None:
        A(f"  s_setprio {tp2}")
        A("  s_nop 0")
    else: A("  s_nop 1")
    if 'tt' in exp: stamp(6)
    for c in (0, 2, 1, 3):
        y = 1 + (c & 1)
        for r in range(4):
            op = "v_mul_f32_dpp" if r == 0 else "v_fmac_f32_dpp"
            A(f"  {op} v{y}, v{DR[c]+r}, v{24+2*r} quad_perm:[0,1,2,3] row_mask:0x{3 if c < 2 else 12:x}")
    A("  s_nop 1")
    A("  v_permlane16_swap_b32 v1, v2")
    A("  v_add_f32 v1, v1, v2")
    A("  v_bfi_b32 v1, s73, v6, v1")
    A("  buffer_store_dword v1, v7, s[40:43], s72 offen sc1")
    if 'st' not in exp: stamp(7)
    end()

    if debug:
        A("L_dbg:")
        A("  s_mov_b64 exec, -1")
        A("  s_memrealtime s[96:97]")
        A("  s_getreg_b32 s98, hwreg(HW_REG_XCC_ID)")
        A("  s_getreg_b32 s99, hwreg(HW_REG_HW_ID)")
        if 'pc' in exp:
            A("  s_getpc_b64 s[30:31]")
            A("  s_mov_b32 s99, s30")
            A("  s_lshl_b32 s31, s31, 4")
            A("  s_and_b32 s98, s98, 15")
            A("  s_or_b32 s98, s98, s31")
        A("  s_waitcnt lgkmcnt(0) vmcnt(0)")
        A("  s_mov_b64 exec, 1")
        A("  s_mul_i32 s30, s2, 8")
        A("  s_add_u32 s30, s30, s100")
        A("  s_lshl_b32 s30, s30, 6")
        A(f"  s_add_u32 s30, s30, {DBG_OFF}")
        A("  v_mov_b32 v0, s30")
        for k in range(8):
            A(f"  v_mov_b32 v{2+k}, s{SB+2*k}")
        A("  v_mov_b32 v10, s96")
        A("  v_mov_b32 v11, s98")
        A(f"  s_and_b32 s47, s47, {CB-1}")
        A("  v_mov_b32 v12, s47")
        A("  v_mov_b32 v13, s101")
        A("  v_mov_b32 v14, s99")
        A("  global_store_dwordx4 v0, v[2:5], s[28:29]")
        A("  global_store_dwordx4 v0, v[6:9], s[28:29] offset:16")
        A("  global_store_dwordx4 v0, v[10:13], s[28:29] offset:32")
        A("  global_store_dword v0, v14, s[28:29] offset:48")
        if 'tl' in exp:
            A("  s_mov_b64 exec, -1")
            A("  s_sub_u32 s30, s100, 2")
            A("  s_cmp_ge_u32 s30, 4")
            A("  s_cbranch_scc1 L_end")
            A("  v_mbcnt_lo_u32_b32 v0, -1, 0")
            A("  v_mbcnt_hi_u32_b32 v0, -1, v0")
            A("  v_lshlrev_b32 v0, 3, v0")
            A("  s_lshl_b32 s31, s30, 9")
            A(f"  s_add_u32 s31, s31, {LDS_SIZE}")
            A("  v_add_u32 v1, s31, v0")
            A("  ds_read_b64 v[2:3], v1")
            A("  s_lshl2_add_u32 s30, s2, s30")
            A("  s_lshl_b32 s30, s30, 9")
            A(f"  s_add_u32 s30, s30, {DBG_OFF + (1 << 20)}")
            A("  v_add_u32 v0, s30, v0")
            A("  s_waitcnt lgkmcnt(0)")
            A("  global_store_dwordx2 v0, v[2:3], s[28:29]")
        if 'h2' in exp:
            from h2 import h2
            h2(A, jobmap())
        A("  s_endpgm")
    A("L_end:")
    A("  s_endpgm")
    A('.section .rodata,"a"')
    A(".p2align 6")
    A(f".amdhsa_kernel {NAME}")
    A("  .amdhsa_next_free_vgpr 256")
    A("  .amdhsa_next_free_sgpr 102")
    A("  .amdhsa_accum_offset 256")
    A("  .amdhsa_group_segment_fixed_size 0")
    A("  .amdhsa_kernarg_size 104")
    A("  .amdhsa_user_sgpr_count 2")
    A("  .amdhsa_user_sgpr_kernarg_segment_ptr 1")
    A("  .amdhsa_system_sgpr_workgroup_id_x 1")
    A(".end_amdhsa_kernel")
    s = "\n".join(x for x in L if x is not None) + "\n"
    if debug:
        s = s.replace("  v_lshrrev_b32 v2, 4, v0           ; g\n", "  v_lshrrev_b32 v2, 4, v0           ; g\n  s_mov_b32 s100, s3\n", 1)
    return s


if __name__ == "__main__":
    import argparse, json
    ap = argparse.ArgumentParser()
    ap.add_argument('-o', default='gated_mix__mha_block_cached__swiglu_ffn__decode.s')
    ap.add_argument('--cfg', default='{}')
    a = ap.parse_args()
    s = gen(**json.loads(a.cfg))
    open(a.o, 'w').write(s)
    sys.path.insert(0, 'work')
    from lint import lint
    e = lint(s)
    for x in e: print(f"HAZARD L{x[0]}->L{x[1]} need {x[2]} have {x[3]}: {x[4]}  ==>  {x[5]}")
    print("hazards:", len(e))
```

```python
import sys, math, struct

NAME = "gated_mix__mha_block_cached__swiglu_ffn__decode_kernel"

def f2u(x):
    return struct.unpack('<I', struct.pack('<f', x))[0]

LOG2E = 1.4426950408889634
CSC = 0.0625 * LOG2E

QL, ML, TAG, WF, TK, OP, TB1, TBQ, STG = 0, 512, 544, 548, 560, 1024, 4096, 8192, 16384
TQ = STG
PP, PS = 272, 544
SC = STG + 4 * 32768
LDS_SIZE = SC + 8192
XS_OFF = 0xE0000
FD_OFF = 1024
EP_OFF, MLS_OFF, GU_OFF, QS_OFF, YS_OFF = 0, 0xF0000, 8192, 0x10000, 0x50000
WS_N = 1 << 20
assert YS_OFF + 56 * 10240 <= XS_OFF and XS_OFF + 65536 <= MLS_OFF and MLS_OFF + 32768 <= WS_N and FD_OFF + 56 * 128 <= GU_OFF and GU_OFF + 8 * 7168 <= QS_OFF
DBG_OFF = 16 << 20
NW = int(__import__('os').environ.get('NW','6'))
NWAVES = 8
BOUND = 0x20000
CB = 0x200000


def jobmap():
    import numpy as np
    wg = np.arange(256); x8 = wg & 7; r = wg >> 3; b = r & 7; role = (r >> 3) & 1
    z = (7 - b) * 16 + (r >> 4) * 8 + x8
    return np.where(role == 0, np.where(z < 112, z, 200), np.where(z < 56, 112 + z, 200))


def gen(debug=False, ring=5, wqflag='nt', wflag='nt', oflag='', npoll=3, qsleep=8, exp='', csleep=8, cthr=64, cthr2=128, cdep=5, cpre=260, cdel=0,
        kflag='nt', vflag='nt', fsleep=64, LV=(0, 2, 4), dl=60, cc=40, tp0=1200, tpp=400, tq0=1450, tqj=2, rst=256,
        rs=(3, 20), csl=8, tql=250, xf=12, cwait=128, d2=3, lring=2, tw=160, wdelay=0, qdelay=0, wpace=0, tprio=0, pf=0, pdel=0, pflag='', lq=0, lp=0, lpf=0, wsp=1, wst=4, wsb=0, xflag='', outf='', d3=4, xb=0, rot=None, il=0, grp=0, grot=0, stk=0, rb=0, pm=None, xm=(), tb=12, clr=0, ns=2, cdb=1, mst=128, pb=0, mlr=1, cpl=1, tps=0, tpo=0, tpf='nt', tpb=0, b1=0, qm_=0, qfirst=0, qrs=0, kl=0.0, pe=256, xf2=None, ks=0, sv=0, qk=0, qtb=10, qcen=1, jm=0, nm=0, par=0, xfo=None, dlo=None, om=0xaa, pff=0, jr=0, jdel=0, tpb7=7, LVv=None, dw=None, qsf='sc1', qlf='sc1', r0=0xffff, tp2=None, go=0, gof=0, rw=None, rws=2):
    L = []
    A = L.append
    assert lring == 2 and ring <= 6 and cpre <= 260 and cwait <= 256 and tw + wsp * wst <= 256 and (8 // ns + 1) * (cdep - 1) <= 63 and not clr
    depth = ring * 8
    NL, LT, TL = 8 // ns, 16 // ns, 4 * ns
    lgT = TL.bit_length() - 1; lgL = LT.bit_length() - 1; lgm = mst.bit_length() - 1

    hdr = open('gated_mix__mha_block_cached__swiglu_ffn__decode.s.ref').read().split('\n')
    for line in hdr:
        if line.startswith('; @launch'):
            break
        A(line)
    A(f"; @launch grid=(256,1,1) block=({NWAVES*64},1,1) lds={LDS_SIZE + (2048 if 'tl' in exp else 0)}")
    A('.amdgcn_target "amdgcn-amd-amdhsa--gfx950"')
    A(".text")
    A(f".globl {NAME}")
    A(".p2align 8")
    A(f".type {NAME},@function")
    A(f"{NAME}:")

    SB = 80
    def stamp(k):
        if debug:
            A(f"  s_memrealtime s[{SB+2*k}:{SB+2*k+1}]")

    def end():
        if debug:
            A("  s_branch L_dbg")
        else:
            A("  s_endpgm")

    def srd(dst, ptr, off_sgpr, nrec):
        if off_sgpr is None:
            A(f"  s_mov_b32 s{dst}, s{ptr}")
            A(f"  s_and_b32 s{dst+1}, s{ptr+1}, 0xffff")
        else:
            A(f"  s_add_u32 s{dst}, s{ptr}, {off_sgpr}")
            A(f"  s_addc_u32 s{dst+1}, s{ptr+1}, 0")
            A(f"  s_and_b32 s{dst+1}, s{dst+1}, 0xffff")
        A(f"  s_mov_b32 s{dst+2}, {nrec}")
        A(f"  s_mov_b32 s{dst+3}, 0x20000")

    def rnd2(a):
        A(f"  v_cvt_pk_bf16_f32 v{a+1}, v{a}, v{a+1}")
        A(f"  v_lshlrev_b32 v{a}, 16, v{a+1}")
        A(f"  v_and_b32 v{a+1}, 0xffff0000, v{a+1}")

    def rnd1(a):
        A(f"  v_cvt_pk_bf16_f32 v{a}, v{a}, v{a}")
        A(f"  v_lshlrev_b32 v{a}, 16, v{a}")

    WO = 96
    DR = (236, 240, 244, 252)
    def woreg(t, c, hi): return WO + 32 * (t >> 1) + 8 * c + 4 * (t & 1) + 2 * hi

    def tail_setup():
        A("  v_and_b32 v3, 3, v0")
        A(f"  v_mul_u32_u24 v3, {PS}, v3")
        A("  v_bfe_u32 v5, v0, 2, 1")
        A(f"  v_mul_u32_u24 v7, {PP}, v5")
        A("  v_add_u32 v3, v3, v7")
        A("  v_lshrrev_b32 v7, 4, v0")
        A("  v_lshl_add_u32 v3, v7, 4, v3")
        A("  v_mul_u32_u24 v5, 0xaaaa, v5")
        A("  v_add_u32 v5, 0x4444, v5")
        A("  v_lshlrev_b32 v7, 2, v0")
        for d in DR:
            A(f"  v_mov_b64 v[{d}:{d+1}], 0")
            A(f"  v_mov_b64 v[{d+2}:{d+3}], 0")

    def traddr(dst, t0, base):
        A(f"  v_bfe_u32 v{t0}, v0, 2, 2")
        A(f"  v_lshlrev_b32 v{t0}, 7, v{t0}")
        A(f"  v_lshrrev_b32 v{dst}, 4, v0")
        A(f"  v_lshl_add_u32 v{t0}, v{dst}, 10, v{t0}")
        A(f"  v_and_b32 v{dst}, 3, v0")
        A(f"  v_lshl_add_u32 v{dst}, v{dst}, 3, v{t0}")
        A(f"  v_add_u32 v{dst}, {base}, v{dst}")

    A("  s_cmp_ge_u32 s2, 256")
    A("  s_cbranch_scc1 L_end")
    A("  s_load_dwordx16 s[4:19], s[0:1], 0")
    A("  s_load_dwordx8 s[20:27], s[0:1], 64")
    A("  s_load_dwordx2 s[28:29], s[0:1], 96")
    if debug:
        for r in range(SB, SB + 16): A(f"  s_mov_b32 s{r}, 0")
        A("  s_mov_b32 s47, 0")
        A("  s_mov_b32 s101, 0")
    stamp(0)
    A("  v_lshrrev_b32 v1, 6, v0")
    A("  v_and_b32 v0, 63, v0")
    A("  v_readfirstlane_b32 s3, v1        ; wave")
    A("  v_lshrrev_b32 v2, 4, v0           ; g")
    A("  v_and_b32 v3, 15, v0              ; n / j")
    A("  s_and_b32 s30, s2, 7              ; x8")
    A("  s_lshr_b32 s31, s2, 3             ; r")
    A("  s_and_b32 s32, s31, 7             ; b")
    A("  s_bfe_u32 s33, s31, 0x10003       ; role")
    A("  s_lshl_b32 s35, s30, 5")
    A("  s_add_u32 s35, s35, s31           ; q slice")
    A("  s_lshr_b32 s36, s31, 4")
    A(f"  s_lshl1_add_u32 s34, s{32 if xb else 30}, s36     ; h")
    A("  s_lshl3_add_u32 s62, s36, s30")
    A("  s_sub_u32 s36, 7, s32")
    A("  s_lshl4_add_u32 s62, s36, s62     ; z")
    if xb: A("  s_mov_b32 s32, s30")
    if nm:
        A("  s_lshr_b32 s33, s30, 2            ; role")
        A("  s_and_b32 s34, s30, 3")
        A("  s_lshr_b32 s36, s31, 3")
        A("  s_lshl2_add_u32 s34, s34, s36     ; h")
    if ns == 4:
        A("  s_lshl4_add_u32 s39, s33, s34     ; tile index")
    else:
        A(f"  s_lshr_b32 s36, s34, {lgT}")
        A("  s_lshl1_add_u32 s36, s36, s33")
        A(f"  s_and_b32 s37, s34, {TL-1}")
        A(f"  s_lshl{lgT}_add_u32 s39, s36, s37     ; tile index")
    A("  s_mul_i32 s72, s32, 10240")
    A("  s_lshl_b32 s36, s39, 8")
    A("  s_add_u32 s72, s72, s36")
    A(f"  s_add_u32 s72, s72, {YS_OFF}")
    A("  s_sub_u32 s38, s3, 2")
    A("  s_cmp_lt_u32 s38, 4")
    A("  s_cbranch_scc1 L_stream")
    A("  s_setprio 3")
    A("  v_lshlrev_b32 v6, 4, v0           ; lane*16")
    A("  v_and_b32 v11, 7, v3              ; n&7")
    A("  v_mov_b32 v14, 0")
    A("  s_cmp_eq_u32 s3, 1")
    A("  s_cbranch_scc1 L_j")
    A("  s_cmp_lg_u32 s3, 0")
    A("  s_cbranch_scc1 L_w")

    WB, XB, AB, PB = 32, 88, 144, 200
    A("  s_memrealtime s[68:69]")
    QS = 2 if 'q128' in exp else 1 if ('q64' in exp or qk) else 0
    A(f"  v_lshrrev_b32 v4, {1+QS}, v0")
    A("  v_lshlrev_b32 v4, 13, v4")
    A(f"  v_and_b32 v5, {(2<<QS)-1}, v0")
    A("  v_lshl_add_u32 v4, v5, 4, v4      ; (l>>1)*8192 + (l&1)*16")
    A("  v_mul_u32_u24 v5, 896, v11")
    A("  v_lshrrev_b32 v7, 3, v3")
    A("  v_lshl_add_u32 v5, v7, 6, v5")
    A("  v_lshl_add_u32 v5, v2, 4, v5      ; (n&7)*896 + (n>>3)*64 + g*16")
    A("  s_lshl_b32 s36, s35, 5            ; h*512 + i*32")
    if QS:
        A(f"  s_andn2_b32 s36, s36, {(32<<QS)-1}")
        A(f"  s_and_b32 s30, s35, {(1<<QS)-1}")
        A(f"  s_mul_i32 s30, s30, {(448>>QS)*8192}")
        A("  s_add_u32 s36, s36, s30")
    A("  s_sub_u32 s30, 448*8192, s36")
    A("  s_mov_b32 s44, 0")
    A("  v_lshlrev_b32 v9, 3, v0           ; lane*8")
    if 'k0' in exp: stamp(5)
    A("  s_waitcnt lgkmcnt(0)")
    if 'k0' in exp: stamp(6)
    if wsb:
        A(f"  s_mov_b32 s60, {hex((wsb << 20) + EP_OFF)}")
        A(f"  s_load_dword s60, s[28:29], s60")
    else:
        A(f"  s_load_dword s60, s[28:29], {EP_OFF}")
    srd(56, 4, None, 7168)
    if qk:
        A("  s_and_b32 s45, s35, 1             ; k half")
        A("  s_mul_i32 s46, s45, 448")
    for u in range(4 if qk else 7):
        A(f"  buffer_load_dwordx4 v[{XB+4*u}:{XB+4*u+3}], v5, s[56:59], {'s46' if qk else 0} offen offset:{u*128} {xflag}")
    srd(48, 10, 's36', 0 if 'zq' in exp else 's30')
    for t in range(14):
        A(f"  buffer_load_dwordx4 v[{WB+4*t}:{WB+4*t+3}], v4, s[48:51], s44 offen {wqflag}")
        if t < 13:
            A(f"  s_add_u32 s44, s44, {(32>>QS)*8192}")
    if 'k0' in exp: stamp(4)
    A("  s_barrier")
    if 'k0' in exp: stamp(7)
    srd(40, 28, hex(wsb << 20) if wsb else None, WS_N)
    if qk:
        A("  v_mul_u32_u24 v7, 544, v2")
        A("  v_lshrrev_b32 v8, 2, v3")
        A("  v_lshl_add_u32 v7, v8, 6, v7")
        A("  v_and_b32 v8, 3, v3")
        A("  v_lshl_add_u32 v7, v8, 3, v7      ; g*544 + (n>>2)*64 + (n&3)*8")
        A("  v_lshlrev_b32 v8, 11, v11")
        A("  v_lshrrev_b32 v10, 3, v3")
        A("  v_lshl_add_u32 v8, v10, 6, v8")
        A("  v_lshl_add_u32 v8, v2, 4, v8      ; (n&7)*2048 + (n>>3)*64 + g*16")
        A("  v_lshrrev_b32 v10, 5, v0")
        A("  v_lshl_add_u32 v10, v10, 5, v6")
        A("  s_lshl3_add_u32 s46, s34, s32")
        A("  s_lshl_b32 s46, s46, 11")
        A(f"  s_add_u32 s46, s46, {QS_OFF}")
        A("  s_lshl_b32 s45, s45, 10")
        A("  s_lshr_b32 s36, s35, 4")
        A("  s_lshl_b32 s36, s36, 14")
        A("  s_add_u32 s45, s45, s36")
        A("  s_bfe_u32 s36, s35, 0x30001")
        A("  s_lshl_b32 s36, s36, 7")
        A("  s_add_u32 s45, s45, s36")
        A(f"  s_add_u32 s45, s45, {QS_OFF}           ; q publish offset")
        A(f"  s_movk_i32 s73, {hex((1 << qtb) - 1)}")
    else:
        A("  v_lshlrev_b32 v7, 8, v2")
        A("  v_lshl_add_u32 v7, v3, 3, v7      ; g*256 + n*8")
        A("  v_lshlrev_b32 v8, 6, v11")
        A("  v_lshl_add_u32 v8, v2, 4, v8      ; (n&7)*64 + g*16")
        A("  v_lshrrev_b32 v10, 2, v0")
        A("  v_lshlrev_b32 v10, 9, v10")
        A("  v_and_b32 v12, 3, v0")
        A("  v_lshl_add_u32 v10, v12, 4, v10   ; (l>>2)*512 + (l&3)*16")
        A("  s_lshl_b32 s46, s34, 13")
        A(f"  s_add_u32 s46, s46, {QS_OFF}")
        A("  s_lshl_b32 s45, s35, 9")
        A(f"  s_add_u32 s45, s45, {QS_OFF}           ; q publish offset")
        A("  s_lshl_b32 s36, s32, 6")
        A("  s_add_u32 s46, s46, s36")
        A("  s_mov_b32 s64, 0x00ff00ff")
        A("  s_mov_b32 s65, 0x00ff00ff")
    A("  s_waitcnt lgkmcnt(0)")
    A("  s_add_u32 s60, s60, 1")
    A("  v_mov_b32 v25, s60")
    A("  v_mov_b32 v27, s60")
    A(f"  ds_write_b32 v14, v25 offset:{TAG}")
    if 'nq' in exp:
        A("  s_waitcnt lgkmcnt(0)")
        A("  s_barrier")
    if qk:
        QT = 12
        A(f"  v_mov_b32 v{QT}, s60")
        def qm(sx):
            for c in range(2):
                d = 16 + 8 * c + 4 * (sx & 1)
                a = AB + 8 * sx + 4 * c
                C = f"v[{d}:{d+3}]" if sx >= 2 else "0"
                A(f"  v_mfma_f32_16x16x32_bf16 v[{d}:{d+3}], v[{a}:{a+3}], v[{XB+4*(sx>>1)}:{XB+4*(sx>>1)+3}], {C}")
        for sx in range(7):
            A(f"  s_waitcnt vmcnt({12-2*sx})")
            for e in range(2):
                t = 2 * sx + e
                A(f"  ds_write_b128 v10, v[{WB+4*t}:{WB+4*t+3}] offset:{TQ+t*1088}")
            for c in range(2):
                for hi in range(2):
                    a = AB + 8 * sx + 4 * c + 2 * hi
                    A(f"  ds_read_b64_tr_b16 v[{a}:{a+1}], v7 offset:{TQ+sx*2176+c*32+hi*256}")
            if sx >= 1:
                A("  s_waitcnt lgkmcnt(6)")
                qm(sx - 1)
        A("  s_waitcnt lgkmcnt(0)")
        qm(6)
        A("  s_nop 7")
        for r in range(4):
            A(f"  v_add_f32_dpp v{16+r}, v{20+r}, v{16+r} row_ror:8 bank_mask:0x3")
            A(f"  v_add_f32_dpp v{16+r}, v{24+r}, v{28+r} row_ror:8 bank_mask:0xc")
        for r in range(4):
            A(f"  v_bfi_b32 v{16+r}, s73, v{QT}, v{16+r}")
        A(f"  buffer_store_dwordx4 v[16:19], v8, s[40:43], s45 offen {qsf}")
        if go:
            A("  s_and_b32 s65, s2, 7")
            A(f"  s_mul_i32 s65, s65, {rst}")
            A(f"  s_add_u32 s65, s65, {XS_OFF}")
            A(f"  s_cmp_eq_u32 s31, {rs[1]}")
            A(f"  s_cselect_b32 s36, {8*rst}, 0")
            A(f"  s_cselect_b32 s30, {rs[0]}, s31")
            A("  s_add_u32 s65, s65, s36")
            A(f"  v_mov_b32 v{QT+1}, s68")
            A(f"  s_cmp_eq_u32 s30, {rs[0]}")
            A("  s_cbranch_scc0 L_ngo")
            A("  s_mov_b64 exec, 1")
            A(f"  buffer_store_dwordx2 v[{QT}:{QT+1}], v14, s[40:43], s65 offen sc1")
            A("  s_mov_b64 exec, -1")
            A("L_ngo:")
        stamp(2)
        if qfirst: A(f"  s_sleep {qfirst}")
        A(f"  s_mov_b32 s47, {-BOUND}")
        A(f"  v_mov_b32 v13, {1 << (qtb - 1)}")
        A("L_qpoll:")
        A(f"  buffer_load_dwordx4 v[{PB}:{PB+3}], v6, s[40:43], s46 offen {qlf}")
        A(f"  buffer_load_dwordx4 v[{PB+4}:{PB+7}], v6, s[40:43], s46 offen offset:1024 {qlf}")
        A("  s_waitcnt vmcnt(0)")
        A("  s_mov_b64 exec, -1")
        for r in range(4):
            A(f"  v_bitop3_b32 v{20+r}, v{PB+2*r}, v{PB+2*r+1}, v{QT} bitop3:0x7e")
        A("  v_or3_b32 v20, v20, v21, v22")
        A("  v_bitop3_b32 v20, v20, s73, v23 bitop3:0xc8")
        A("  v_cmp_ne_u32 vcc, 0, v20")
        A("  s_cbranch_vccz L_qok")
        if qrs: A(f"  s_sleep {qrs}")
        if qm_: A("  s_mov_b64 exec, vcc")
        A("  s_add_u32 s47, s47, 1")
        A("  s_cbranch_scc0 L_qpoll")
        A("  s_mov_b64 exec, -1")
        A("L_qok:")
        if qcen:
            for r in range(8):
                A(f"  v_bfi_b32 v{PB+r}, s73, v13, v{PB+r}")
        A(f"  v_pk_add_f32 v[{PB}:{PB+1}], v[{PB}:{PB+1}], v[{PB+4}:{PB+5}]")
        A(f"  v_pk_add_f32 v[{PB+2}:{PB+3}], v[{PB+2}:{PB+3}], v[{PB+6}:{PB+7}]")
        A(f"  v_cvt_pk_bf16_f32 v{PB}, v{PB}, v{PB+1}")
        A(f"  v_cvt_pk_bf16_f32 v{PB+1}, v{PB+2}, v{PB+3}")
        A(f"  ds_write_b64 v9, v[{PB}:{PB+1}] offset:{QL}")
    else:
        def qm(t):
            d = 16 + 4 * (t & 1)
            C = f"v[{d}:{d+3}]" if t >= 2 else "0"
            A(f"  v_mfma_f32_16x16x32_bf16 v[{d}:{d+3}], v[{AB+4*t}:{AB+4*t+3}], v[{XB+4*(t>>1)}:{XB+4*(t>>1)+3}], {C}")
        for t in range(14):
            A(f"  s_waitcnt vmcnt({13-t})")
            A(f"  ds_write_b128 v6, v[{WB+4*t}:{WB+4*t+3}] offset:{TQ+t*1024}")
            A(f"  ds_read_b64_tr_b16 v[{AB+4*t}:{AB+4*t+1}], v7 offset:{TQ+t*1024}")
            A(f"  ds_read_b64_tr_b16 v[{AB+4*t+2}:{AB+4*t+3}], v7 offset:{TQ+t*1024+128}")
            if t >= 2:
                A("  s_waitcnt lgkmcnt(6)")
                qm(t - 2)
        A("  s_waitcnt lgkmcnt(3)")
        qm(12)
        A("  s_waitcnt lgkmcnt(0)")
        qm(13)
        A("  s_nop 7")
        for r in range(4):
            A(f"  v_add_f32_dpp v{16+r}, v{20+r}, v{16+r} row_ror:8")
        A("  v_cvt_pk_bf16_f32 v24, v16, v17")
        A("  v_cvt_pk_bf16_f32 v26, v18, v19")
        A("  s_mov_b64 exec, s[64:65]")
        if 'np' not in exp: A("  buffer_store_dwordx4 v[24:27], v8, s[40:43], s45 offen sc1")
        A("  s_mov_b64 exec, -1")
        stamp(2)
        if 'np' in exp or 'nl' in exp: A("  s_branch L_qdone")
        if qfirst: A(f"  s_sleep {qfirst}")
        if qm_:
            def qpl():
                A(f"  buffer_load_dwordx4 v[{PB}:{PB+3}], v10, s[40:43], s46 offen sc1")
            for k in range(npoll):
                qpl()
                if k < npoll - 1 and qsleep:
                    A(f"  s_sleep {qsleep}")
            A(f"  s_mov_b32 s47, {-BOUND}")
            A("L_qpoll:")
            A(f"  s_waitcnt vmcnt({npoll-1})")
            A(f"  v_bitop3_b32 v12, v{PB+1}, v{PB+3}, v25 bitop3:0x7e")
            A("  v_cmp_ne_u32 vcc, 0, v12")
            A("  s_cbranch_vccz L_qok")
            if qrs: A(f"  s_sleep {qrs}")
            A("  s_mov_b64 exec, vcc")
            qpl()
            A("  s_mov_b64 exec, -1")
            A("  s_add_u32 s47, s47, 1")
            A("  s_cbranch_scc0 L_qpoll")
            A("L_qok:")
            A(f"  ds_write2_b32 v9, v{PB}, v{PB+2} offset0:{QL//4} offset1:{QL//4+1}")
        else:
            def qpl(k):
                A(f"  buffer_load_dwordx4 v[{PB+4*k}:{PB+4*k+3}], v10, s[40:43], s46 offen sc1")
            for k in range(npoll):
                qpl(k)
                if k < npoll - 1 and qsleep:
                    A(f"  s_sleep {qsleep}")
            A("  s_mov_b32 s47, 0")
            A("L_qpoll:")
            for k in range(npoll):
                A(f"  s_waitcnt vmcnt({npoll-1})")
                A(f"  v_cmp_ne_u32 vcc, s60, v{PB+4*k+1}")
                A(f"  v_cmp_ne_u32 s[66:67], s60, v{PB+4*k+3}")
                A("  s_or_b64 vcc, vcc, s[66:67]")
                A(f"  s_cbranch_scc0 L_qok{k}")
                qpl(k)
            A("  s_add_u32 s47, s47, 1")
            A(f"  s_cmp_lt_u32 s47, {BOUND}")
            A("  s_cbranch_scc1 L_qpoll")
            A("  s_waitcnt vmcnt(0)")
            for k in range(npoll):
                A(f"L_qok{k}:")
                A(f"  ds_write2_b32 v9, v{PB+4*k}, v{PB+4*k+2} offset0:{QL//4} offset1:{QL//4+1}")
                if k < npoll - 1:
                    A("  s_branch L_qdone")
    A("L_qdone:")
    stamp(1)
    A("  s_waitcnt lgkmcnt(0)")
    if 'nq' not in exp: A("  s_barrier")
    stamp(3)
    A("  s_mov_b32 s38, 4")
    A(f"  s_mov_b32 s46, {TBQ}")
    for _ in range(qdelay): A(f"  s_sleep 32")
    A("  s_waitcnt vmcnt(0)")
    if go:
        A(f"  v_mul_u32_u24 v20, {rst}, v3")
        A(f"  s_mov_b32 s64, {XS_OFF}")
        A("  buffer_load_dwordx2 v[16:17], v20, s[40:43], s64 offen sc1")
    A("L_ltw:")
    A(f"  s_mul_i32 s36, s34, {0 if 'sh' in exp else 256*896}")
    A("  s_lshl_b32 s30, s38, 7")
    A("  s_add_u32 s36, s36, s30")
    srd(48, 12, 's36', 0 if 'no' in exp else 255 * 896 + 128)
    A("  s_mul_i32 s30, s38, 8*10240")
    A("  s_add_u32 s72, s72, s30")
    A("  v_lshrrev_b32 v4, 3, v0")
    A("  v_mul_u32_u24 v4, 896, v4")
    A("  v_and_b32 v5, 7, v0")
    A("  v_lshl_add_u32 v4, v5, 4, v4      ; (l>>3)*896 + (l&7)*16")
    A("  v_add_u32 v9, s46, v6")
    traddr(10, 5, 's46')
    A("  s_mov_b32 s44, 0")
    if lp > lq:
        A("  s_cmp_lg_u32 s3, 0")
        A("  s_cselect_b64 vcc, -1, 0")
    for k in range(32):
        A(f"  buffer_load_dwordx4 v[{WO+4*k}:{WO+4*k+3}], v4, s[48:51], s44 offen {oflag}")
        if k < 31:
            A("  s_add_u32 s44, s44, 8*896")
            if lq: A(f"  s_sleep {lq}")
            if lp > lq:
                A(f"  s_cbranch_vccz L_lp{k}")
                A(f"  s_sleep {lp-lq}")
                A(f"L_lp{k}:")
    for u in range(4):
        A(f"  s_waitcnt vmcnt({24-8*u})")
        for k in range(8):
            r = WO + 32 * u + 4 * k
            A(f"  ds_write_b128 v9, v[{r}:{r+3}] offset:{k*1024}")
        for tt in range(2):
            for c in range(4):
                for hi in range(2):
                    r = woreg(2 * u + tt, c, hi)
                    A(f"  ds_read_b64_tr_b16 v[{r}:{r+1}], v10 offset:{tt*4096+hi*512+c*32}")
    A("  s_waitcnt lgkmcnt(0)")
    if 'k0' not in exp: stamp(4)
    A("  s_cmp_lg_u32 s3, 0")
    A("  s_cbranch_scc1 L_wstage")

    A("  v_mov_b32 v12, 0")
    A("  v_mov_b32 v14, s60")
    A("  s_movk_i32 s75, 256               ; cap")
    if go:
        A("  v_cmp_ne_u32 vcc, s60, v16")
        A("  v_subrev_u32 v17, s68, v17")
        A("  v_cvt_f32_i32 v17, v17")
        A("  s_andn2_b32 s30, 0xffff, vcc_lo")
        A("  s_bcnt1_i32_b32 s30, s30")
        A("  v_cndmask_b32 v17, v17, v12, vcc")
        A("  v_cvt_f32_u32 v18, s30")
        A("  v_rcp_f32 v18, v18")
        for sh in (8, 4, 2, 1):
            A(f"  v_add_f32_dpp v17, v17, v17 row_ror:{sh}")
            A("  s_nop 1")
        A("  v_mul_f32 v17, v17, v18")
        A("  v_cvt_i32_f32 v17, v17")
        A(f"  s_movk_i32 s76, {r0}")
        A("  v_readfirstlane_b32 s31, v17")
        A("  s_min_i32 s31, s31, 200")
        A("  s_max_i32 s31, s31, -200")
        if gof: A(f"  s_add_u32 s31, s31, {gof}")
        A(f"  s_cmp_lt_u32 s30, {sv}")
        A("  s_cselect_b32 s31, 0, s31")
        A("  s_cselect_b32 s76, 0xffff, s76")
        A("  s_add_u32 s68, s68, s31")
        if debug and 'gd' in exp: A("  s_mov_b32 s99, s31")
    A(f"  s_add_u32 s68, s68, {cc}          ; origin")
    A("  s_lshr_b32 s30, s2, 3")
    A("  s_and_b32 s65, s2, 7")
    A(f"  s_mul_i32 s65, s65, {rst}")
    A(f"  s_add_u32 s65, s65, {XS_OFF + (16*rst if go else 0)}")
    A("  s_mov_b32 s74, 0x7fffffff")
    A(f"  s_cmp_eq_u32 s30, {rs[0]}")
    A(f"  s_cselect_b32 s74, {tp0}, s74")
    A(f"  s_cmp_eq_u32 s30, {rs[1]}")
    A(f"  s_cselect_b32 s74, {tp0}, s74")
    A(f"  s_cselect_b32 s30, {8*rst}, 0")
    A("  s_add_u32 s65, s65, s30")
    A(f"  s_mov_b32 s64, {XS_OFF + (16*rst if go else 0)}")
    A("  s_and_b32 s79, s2, 31")
    A(f"  s_mul_i32 s79, s79, {tqj}")
    A(f"  s_add_u32 s79, s79, {tq0}")
    A(f"  v_mul_u32_u24 v20, {rst}, v3")
    A("  s_mov_b32 s69, 0x7fffffff")
    if not go: A(f"  s_mov_b32 s76, {hex(r0)}")
    if dlo is not None:
        A("  s_and_b32 s77, s2, 7")
        A(f"  s_bitcmp1_b32 {hex(om)}, s77")
        A(f"  s_movk_i32 s77, {dlo}")
        A(f"  s_cselect_b32 s77, s77, {dl}")
    if debug: A("  s_mov_b32 s47, 0")
    tail_setup()
    A("L_ct:")
    A(f"  s_sleep {csl}")
    A("  s_memrealtime s[66:67]")
    A(f"  ds_read_b32 v13, v12 offset:{TK}")
    if debug: A("  s_add_u32 s101, s101, 0x10000")
    A("  s_waitcnt lgkmcnt(0)")
    A("  s_sub_u32 s31, s66, s68")
    A(f"  s_add_u32 s67, s31, {dl if dlo is None else 's77'}")
    A("  s_mul_i32 s67, s67, s76")
    if kl: A(f"  s_add_u32 s67, s67, {int(kl*pe*65536)}")
    if ks:
        A(f"  s_lshr_b32 s30, s67, {ks}")
        A("  s_sub_u32 s30, s67, s30")
        A(f"  s_add_u32 s30, s30, {(pe << 16) >> ks}")
        A("  s_max_u32 s67, s67, s30")
    A("  s_pack_lh_b32_b16 s67, s75, s67")
    A("  v_mov_b32 v18, s67")
    A(f"  ds_write_b32 v12, v18 offset:{TK+4}")
    A("  v_readfirstlane_b32 s30, v13      ; p")
    A("  s_cmp_ge_u32 s30, s75")
    A("  s_cbranch_scc1 L_ctx")
    A("  s_cmp_lt_u32 s31, s74")
    A("  s_cbranch_scc1 L_ct1")
    A(f"  s_add_u32 s74, s74, {tpp}")
    A("  s_pack_ll_b32_b16 s30, s30, s66")
    A("  v_mov_b32 v15, s30")
    A("  s_mov_b64 exec, 1")
    A("  buffer_store_dwordx2 v[14:15], v12, s[40:43], s65 offen sc1")
    A("  s_mov_b64 exec, -1")
    A(f"  s_add_u32 s65, s65, {16*rst}")
    A(f"  s_cmp_ge_u32 s65, {XS_OFF+65536}")
    A("  s_cselect_b32 s74, 0x7fffffff, s74")
    A("L_ct1:")
    A("  s_cmp_lt_u32 s31, s79")
    A("  s_cbranch_scc1 L_ct2")
    A(f"  s_add_u32 s79, s79, {tpp}")
    A(f"  s_add_u32 s69, s31, {tql}")
    A(f"  buffer_load_dwordx2 v[16:17], v20, s[40:43], s64 offen")
    A(f"  s_add_u32 s64, s64, {16*rst}")
    A(f"  s_cmp_ge_u32 s64, {XS_OFF+65536}")
    A("  s_cselect_b32 s79, 0x7fffffff, s79")
    A("L_ct2:")
    A("  s_cmp_lt_u32 s31, s69")
    A("  s_cbranch_scc1 L_ct")
    A("  s_mov_b32 s69, 0x7fffffff")
    A("  s_waitcnt vmcnt(0)")
    A("  v_cmp_ne_u32 vcc, s60, v16")
    A("  v_lshrrev_b32 v18, 16, v17")
    A("  v_subrev_u32 v18, s68, v18")
    A("  v_and_b32 v18, 0xffff, v18")
    A("  v_cvt_f32_u32 v18, v18")
    A("  v_rcp_f32 v18, v18")
    A("  v_and_b32 v17, 0xffff, v17")
    A("  v_cvt_f32_u32 v17, v17")
    if debug:
        A("  s_and_b32 s30, vcc_lo, 0xffff")
        A("  s_bcnt1_i32_b32 s30, s30")
        A("  s_add_u32 s47, s47, s30")
        A("  s_add_u32 s47, s47, 0x1000")
    if sv:
        A("  s_not_b32 s30, vcc_lo")
        A("  s_bcnt1_i32_b32 s30, s30")
        A(f"  s_cmp_lt_u32 s30, {2*sv}")
        A("  s_cbranch_scc1 L_ct")
        A("  v_mul_f32 v17, v17, v18")
        A("  v_cvt_f32_u32 v18, s30")
        A("  v_cndmask_b32 v17, v17, v12, vcc")
        A("  v_rcp_f32 v18, v18")
    else:
        A("  s_cbranch_vccnz L_ct")
        A("  v_mul_f32 v17, v17, v18")
    for sh in (8, 4, 2, 1):
        A("  s_nop 1")
        A(f"  v_add_f32_dpp v17, v17, v17 row_ror:{sh}")
    if sv: A("  v_mul_f32 v17, v17, v18")
    A(f"  v_mul_f32 v17, 0x{f2u((32 if sv else 1)*4096.0*(1-kl)):x}, v17")
    A("  v_cvt_u32_f32 v17, v17")
    A("  v_min_u32 v17, 0xffff, v17")
    A("  s_nop 0")
    A("  v_readfirstlane_b32 s76, v17")
    A("  s_branch L_ct")
    A("L_ctx:")
    A("  s_waitcnt vmcnt(0) lgkmcnt(0)")
    if debug: A("  s_add_u32 s101, s101, s76")
    if 'k0' not in exp: stamp(5)
    A("  s_branch L_tail")

    A("L_w:")
    A("  s_sub_u32 s38, s3, 1")
    A("  s_sub_u32 s61, s3, 6")
    A("  s_lshl_b32 s46, s61, 16")
    A(f"  s_add_u32 s46, s46, {STG}")
    def touch():
        A("  s_lshl4_add_u32 s36, s32, s34     ; bh")
        A("  s_lshl_b32 s36, s36, 21")
        A("  s_cmp_eq_u32 s61, 0")
        A("  s_cselect_b32 s6, s6, s8")
        A("  s_cselect_b32 s7, s7, s9")
        srd(48, 6, 's36', 2 << 20)
        A(f"  v_mul_u32_u24 v4, {tps}, v0")
        A(f"  s_mov_b32 s44, {tpo}")
        for k in range(max(1, (2 << 20) // tps // 64)):
            A(f"  buffer_load_dword v32, v4, s[48:51], s44 offen {tpf}")
            A(f"  s_add_u32 s44, s44, {tps*64}")
    def pfetch():
        A("  s_lshl1_add_u32 s36, s35, s61")
        A("  s_mul_i32 s36, s36, 7168")
        srd(48, 12, 's36', 7168)
        A("  s_movk_i32 s44, 4096")
        for k in range(7):
            A(f"  buffer_load_dwordx4 v[{32+4*k}:{35+4*k}], v6, s[48:51], {'s44' if k > 3 else '0'} offen offset:{(k%4)*1024} {pflag}")
            if lpf and k < 6: A(f"  s_sleep {lpf}")
    def pfetchf():
        A("  s_lshl1_add_u32 s36, s31, s61")
        A("  s_mul_i32 s36, s36, 7*3584")
        A("  s_and_b32 s37, s30, 3")
        A("  s_mul_i32 s37, s37, 896")
        A("  s_add_u32 s36, s36, s37")
        A("  s_cmp_lt_u32 s30, 4")
        A("  s_cselect_b32 s16, s16, s18")
        A("  s_cselect_b32 s17, s17, s19")
        srd(52, 16, 's36', 6*3584 + 896)
        A("  s_mov_b32 s37, 0")
        A("  s_mov_b32 exec_hi, 0xffffff")
        for k in range(7):
            A(f"  buffer_load_dwordx4 v[{64+4*k}:{67+4*k}], v6, s[52:55], s37 offen {pflag}")
            if k < 6: A("  s_add_u32 s37, s37, 3584")
        A("  s_mov_b32 exec_hi, -1")
        A("  s_lshl1_add_u32 s36, s35, s61")
        A("  s_mul_i32 s36, s36, 3136")
        srd(56, 20, 's36', 3136)
        for k in range(4):
            A(f"  buffer_load_dwordx4 v[{96+4*k}:{99+4*k}], v6, s[56:59], 0 offen offset:{k*1024} {pflag}")
    if tps and tpb == 0:
        A("  s_waitcnt lgkmcnt(0)")
        touch()
    if 'k0' in exp: stamp(1)
    if pf == 3 or pff == 3: A("  s_waitcnt lgkmcnt(0)")
    if 'k0' in exp: stamp(6)
    if pff == 3: pfetchf()
    if pf == 3: pfetch()
    if 'k0' in exp: stamp(2)
    A("  s_barrier")
    if 'k0' in exp: stamp(7)
    A("  s_waitcnt lgkmcnt(0)")
    if tps and tpb == 1: touch()
    srd(40, 28, hex(wsb << 20) if wsb else None, WS_N)
    if pdel and (pf == 1 or pff == 1): A(f"  s_sleep {pdel}")
    if pff == 1: pfetchf()
    if pf == 1: pfetch()
    A("  s_barrier")
    stamp(3)
    if pff == 2: pfetchf()
    if pf == 2: pfetch()
    A(f"  ds_read_b32 v13, v14 offset:{TAG}")
    for _ in range(wdelay): A(f"  s_sleep 32")
    A("  s_waitcnt lgkmcnt(0) vmcnt(0)")
    A("  v_readfirstlane_b32 s60, v13")
    A("  s_branch L_ltw")
    A("L_wstage:")
    A(f"  s_mul_i32 s36, s34, {0 if 'sh' in exp else 256*896}")
    A("  s_lshl_b32 s30, s61, 8")
    A("  s_add_u32 s36, s36, s30")
    srd(48, 12, 's36', 0 if 'no' in exp else 255 * 896 + 256)
    A("  v_mul_u32_u24 v4, 896, v2")
    A("  v_lshl_add_u32 v4, v3, 4, v4      ; g*896 + n*16")
    A("  v_lshrrev_b32 v9, 3, v3")
    A("  v_lshlrev_b32 v9, 15, v9")
    A("  v_lshl_add_u32 v9, v2, 7, v9")
    A("  v_lshl_add_u32 v9, v11, 4, v9")
    A("  v_add_u32 v9, s46, v9             ; (n>>3)*32768 + g*128 + (n&7)*16")
    A("  s_mov_b32 s44, 0")
    A("L_ws:")
    for k in range(16):
        A(f"  buffer_load_dwordx4 v[{32+4*k}:{35+4*k}], v4, s[48:51], s44 offen {oflag}")
        A("  s_add_u32 s44, s44, 4*896")
        if lp and k < 15: A(f"  s_sleep {lp}")
    for k in range(16):
        if k % 4 == 0: A(f"  s_waitcnt vmcnt({12-k})")
        A(f"  ds_write_b128 v9, v[{32+4*k}:{35+4*k}] offset:{k*512}")
    A("  v_add_u32 v9, 8192, v9")
    A("  s_waitcnt lgkmcnt(0)")
    for _ in range(wpace): A(f"  s_sleep 32")
    A("  s_cmp_lt_u32 s44, 256*896")
    A("  s_cbranch_scc1 L_ws")
    A("  v_mov_b32 v13, 1")
    A("  s_mov_b64 exec, 1")
    A(f"  ds_add_u32 v14, v13 offset:{WF}")
    A("  s_mov_b64 exec, -1")
    tail_setup()
    A("  s_waitcnt lgkmcnt(0)")
    stamp(5)
    A("  s_branch L_tail")

    def mk_voffy(dst, tmp):
        A(f"  v_mul_u32_u24 v{dst}, 10240, v11")
        A(f"  v_lshl_add_u32 v{dst}, v2, 4, v{dst}")
        A(f"  v_lshrrev_b32 v{tmp}, 3, v3")
        A(f"  v_lshl_add_u32 v{dst}, v{tmp}, 6, v{dst}   ; (n&7)*10240 + (n>>3)*64 + g*16")

    def wait_done(lab, off):
        A("  s_mov_b32 s47, 0")
        A(f"{lab}:")
        A(f"  buffer_load_dword v16, v13, s[40:43], s76 offen offset:{off} sc1")
        A("  s_waitcnt vmcnt(0)")
        A("  v_cmp_ne_u32 vcc, s60, v16")
        A(f"  s_cbranch_vccz {lab}x")
        A(f"  s_sleep {fsleep}")
        A("  s_add_u32 s47, s47, 1")
        A(f"  s_cmp_lt_u32 s47, {BOUND}")
        A(f"  s_cbranch_scc1 {lab}")
        A(f"{lab}x:")

    A("L_j:")
    if nm: A("  s_bfe_u32 s33, s31, 0x10003")
    if jm:
        mem = [x for x in range(8) if (jm >> x) & 1]; oth = [x for x in range(8) if not (jm >> x) & 1]
        assert len(mem) == 4
        tab = sum(((2 * (mem.index(x) if x in mem else oth.index(x))) | (0 if x in mem else 8)) << (4 * x) for x in range(8))
        A("  s_lshl_b32 s30, s30, 2")
        A(f"  s_lshr_b32 s30, {hex(tab)}, s30")
        A("  s_andn2_b32 s62, s62, 7")
        A("  s_or_b32 s62, s62, s33")
        A("  s_bfe_u32 s33, s30, 0x10003")
        A("  s_and_b32 s30, s30, 6")
        A("  s_or_b32 s62, s62, s30")
    if jr:
        A("  s_and_b32 s36, s62, 7")
        A("  s_mul_i32 s36, s36, 7")
        A("  s_lshr_b32 s37, s62, 3")
        A("  s_add_u32 s36, s36, s37")
        A("  s_lshl_b32 s37, s33, 6")
        A("  s_add_u32 s37, s37, s62")
        A("  s_cmp_lt_u32 s37, 56")
        A("  s_cselect_b32 s62, s36, s62")
    mk_voffy(7, 8)
    if clr:
        A("  s_mov_b32 s75, s72")
        A("  v_mul_u32_u24 v20, 8*10240, v2")
        A("  v_lshl_add_u32 v20, v3, 4, v20    ; g*81920 + n*16")
    A("  v_mov_b32 v13, 0")
    A(f"  ds_write_b32 v13, v13 offset:{WF}")
    A(f"  v_mov_b32 v16, {4*ring}")
    A("  v_mov_b32 v17, 0xffff0100")
    A(f"  ds_write_b64 v13, v[16:17] offset:{TK}")
    A("  s_mov_b32 s77, 10")
    A("  s_movk_i32 s78, 512")
    A("  s_lshl_b32 s79, s32, 12")
    A(f"  s_lshl_b32 s30, s39, {lgm}")
    A("  s_add_u32 s79, s79, s30")
    A(f"  s_add_u32 s79, s79, {MLS_OFF}")
    A("  s_lshl_b32 s74, s62, 10")
    A(f"  s_add_u32 s74, s74, {GU_OFF}      ; G/U piece")
    A("  s_sub_u32 s30, s62, 56")
    A("  s_lshr_b32 s38, s30, 3            ; F2 cg")
    A("  s_and_b32 s30, s30, 7             ; F2 ks")
    A("  s_mul_i32 s72, s38, 4*20480")
    A("  s_lshl_b32 s39, s30, 8")
    A("  s_add_u32 s72, s72, s39")
    A(f"  s_add_u32 s72, s72, {YS_OFF + 32*256}   ; F2 tiles")
    A("  s_lshl_b32 s76, s62, 7")
    A(f"  s_movk_i32 s73, {hex((1 << tb) - 1)}")
    A("  s_mov_b32 s63, 0                  ; no final unit")
    A("  s_waitcnt lgkmcnt(0)")
    A("  s_barrier")
    srd(40, 28, hex(wsb << 20) if wsb else None, WS_N)
    srd(56, 4, None, 7168)
    A(f"  s_mov_b32 s46, {TB1}")
    A("  s_mov_b32 s44, 0")
    stamp(1)
    A("  s_barrier")
    stamp(3)
    A(f"  ds_read_b32 v15, v13 offset:{TAG}")
    A("  s_waitcnt lgkmcnt(0)")
    A("  v_readfirstlane_b32 s60, v15")
    if dw:
        n_, grp_, gs_, ks_, ws_, ws2_, fl_, rep_, act_, op_ = dw[:10]
        ro_ = dw[10] if len(dw) > 10 else list(range(rep_))
        srd(52, 28, hex(32 << 20), 64 << 20)
        lg_ = (grp_ // 16).bit_length() - 1
        A(f"  v_lshrrev_b32 v16, {lg_}, v0")
        A(f"  v_mul_u32_u24 v16, {gs_}, v16")
        A(f"  v_and_b32 v17, {grp_ // 16 - 1}, v0")
        A("  v_lshl_add_u32 v16, v17, 4, v16")
        A(f"  s_bfm_b64 exec, {act_}, 0" if act_ < 64 else "  s_nop 0")
        for rp in range(rep_):
            A("  s_sleep 127")
            A("  s_and_b32 s30, s35, 15")
            A(f"  s_mul_i32 s30, s30, {ws_}")
            A("  s_lshr_b32 s31, s35, 4")
            A(f"  s_mul_i32 s31, s31, {ws2_}")
            A("  s_add_u32 s30, s30, s31")
            A(f"  s_add_u32 s30, s30, {ro_[rp] << 21}")
            for k in range(n_):
                o_ = op_ if isinstance(op_, str) else op_[rp]
                f_ = fl_ if isinstance(fl_, str) else fl_[rp]
                A(f"  buffer_{o_}_dwordx4 v[20:23], v16, s[52:55], s30 offen {f_}")
                A(f"  s_add_u32 s30, s30, {ks_}")
        A("  s_mov_b64 exec, -1")
        A("  s_waitcnt vmcnt(0)")
        A("  s_sub_u32 s30, s62, 56")
        A("  s_and_b32 s30, s30, 7")
    if clr:
        for r in range(16, 20): A(f"  v_not_b32 v{r}, v15")
        A("  buffer_store_dwordx4 v[16:19], v20, s[40:43], s75 offen sc1")
        A("  s_add_u32 s75, s75, 4*8*10240")
        A("  s_mov_b32 exec_hi, 0xffff")
        A("  buffer_store_dwordx4 v[16:19], v20, s[40:43], s75 offen sc1")
        A("  s_mov_b32 exec_hi, -1")
    A("  s_cmp_eq_u32 s33, 1")
    A("  s_cbranch_scc1 L_cpre")
    A(f"  s_cmp_ge_u32 s62, {0 if 'nj' in exp else 112}")
    A(f"  s_cbranch_scc1 {'L_cpre0' if ns == 4 else 'L_jend'}")
    for _ in range(jdel): A("  s_sleep 32")
    A("  s_cmp_ge_u32 s62, 56")
    A("  s_cbranch_scc1 L_f2pre")
    FX = 144
    A("  s_cmp_ge_u32 s62, 28")
    A("  s_cselect_b32 s16, s18, s16")
    A("  s_cselect_b32 s17, s19, s17")
    A("  s_cselect_b32 s30, 28, 0")
    A("  s_sub_u32 s30, s62, s30")
    A("  s_lshl_b32 s30, s30, 7")
    srd(48, 16, 's30', 0 if 'zf' in exp else 447 * 3584 + 128)
    A("  v_mul_u32_u24 v14, 896, v11")
    A("  v_lshl_add_u32 v14, v2, 4, v14    ; (n&7)*896 + g*16")
    for r in range(16, 32, 2):
        A(f"  v_mov_b64 v[{r}:{r+1}], 0")
    for t in range(7):
        A(f"  buffer_load_dwordx4 v[{FX+4*t}:{FX+4*t+3}], v14, s[56:59], 0 offen offset:{t*64} {xflag}")
    A("  s_mov_b32 s45, 3584")
    A("  s_mov_b32 s61, 1")
    A("  s_mov_b32 s75, 0")
    A("L_lt7a:")
    A("  v_lshrrev_b32 v4, 3, v0")
    A("  v_mul_lo_u32 v4, v4, s45")
    A("  v_and_b32 v5, 7, v0")
    A("  v_lshl_add_u32 v4, v5, 4, v4      ; (l>>3)*stride + (l&7)*16")
    A("  s_lshl_b32 s45, s45, 3")
    A("  v_add_u32 v9, s46, v6")
    A("  v_lshrrev_b32 v5, 2, v3")
    A("  v_lshlrev_b32 v5, 7, v5")
    A("  v_lshl_add_u32 v5, v2, s77, v5")
    A("  v_and_b32 v10, 3, v3")
    A("  v_lshl_add_u32 v10, v10, 3, v5")
    A("  v_add_u32 v10, s46, v10           ; g*1024 + (n>>2)*128 + (n&3)*8")
    A("  v_add_u32 v8, s78, v10")
    A("L_lt7:")
    for k in range(28):
        A(f"  buffer_load_dwordx4 v[{WB+4*k}:{WB+4*k+3}], v4, s[48:51], s44 offen {wflag}")
        A("  s_add_u32 s44, s44, s45")
    for t in range(7):
        A(f"  s_waitcnt vmcnt({24-4*t}) lgkmcnt(2)")
        for k in range(4):
            r = WB + 16 * t + 4 * k
            A(f"  ds_write_b128 v9, v[{r}:{r+3}] offset:{k*1024}")
        for c in range(4):
            for hi in range(2):
                r = WB + 16 * t + 4 * c + 2 * hi
                A(f"  ds_read_b64_tr_b16 v[{r}:{r+1}], v{8 if hi else 10} offset:{c*32}")
    A("  s_waitcnt lgkmcnt(0)")
    A("  s_cmp_eq_u32 s61, 2")
    A("  s_cbranch_scc1 L_f2")
    A("L_mm7:")
    for t in range(7):
        for c in range(4):
            d = 16 + 4 * c
            a = WB + 16 * t + 4 * c
            A(f"  v_mfma_f32_16x16x32_bf16 v[{d}:{d+3}], v[{a}:{a+3}], v[{FX+4*t}:{FX+4*t+3}], v[{d}:{d+3}]")
    A("  s_nop 7")
    A("  s_cmp_eq_u32 s61, 2")
    A("  s_cbranch_scc1 L_f2post")
    A("  s_cmp_eq_u32 s75, 1")
    A("  s_cbranch_scc1 L_f1post")
    A("  s_mov_b32 s75, 1")
    for t in range(7):
        A(f"  buffer_load_dwordx4 v[{FX+4*t}:{FX+4*t+3}], v14, s[56:59], 0 offen offset:{448+t*64} {xflag}")
    A("  s_branch L_lt7")
    A("L_f1post:")
    A("  s_cmp_ge_u32 s62, 28")
    A("  s_cbranch_scc1 L_f1pub")
    for k in range(16, 32, 2):
        rnd2(k)
        A(f"  v_mul_f32 v32, 0x{f2u(-LOG2E):x}, v{k}")
        A(f"  v_mul_f32 v33, 0x{f2u(-LOG2E):x}, v{k+1}")
        A("  v_exp_f32 v32, v32")
        A("  v_exp_f32 v33, v33")
        A("  v_add_f32 v32, 1.0, v32")
        A("  v_add_f32 v33, 1.0, v33")
        A("  v_rcp_f32 v32, v32")
        A("  v_rcp_f32 v33, v33")
        A("  s_nop 0")
        A(f"  v_pk_mul_f32 v[{k}:{k+1}], v[{k}:{k+1}], v[32:33]")
    A("L_f1pub:")
    A("  v_lshlrev_b32 v14, 6, v3")
    A("  v_lshl_add_u32 v14, v2, 4, v14    ; n*64 + g*16")
    for c in range(4):
        A(f"  v_cvt_pk_bf16_f32 v{32+2*c}, v{16+4*c}, v{17+4*c}")
        A(f"  v_cvt_pk_bf16_f32 v{33+2*c}, v{18+4*c}, v{19+4*c}")
    A("  s_nop 1")
    for r in range(4):
        A(f"  v_mov_b32_dpp v{32+r}, v{36+r} quad_perm:[0,1,2,3] bank_mask:0xc")
    A("  buffer_store_dwordx4 v[32:35], v14, s[40:43], s74 offen sc1")
    A("  s_mov_b64 exec, 1")
    A("  s_waitcnt vmcnt(0)")
    A(f"  buffer_store_dword v15, v6, s[40:43], s76 offen offset:{FD_OFF} sc1")
    A("  s_mov_b64 exec, -1")
    stamp(5)
    A(f"  s_branch {'L_cpre0' if ns == 4 else 'L_jend'}")
    if clr:
        A("L_jidle:")
        A("  s_waitcnt vmcnt(0)")
        A("  s_branch L_jend")
    A("L_f2pre:")
    if clr:
        A("  buffer_store_dwordx4 v[16:19], v7, s[40:43], s72 offen sc1")
        A("  buffer_store_dwordx4 v[16:19], v7, s[40:43], s72 offen offset:128 sc1")
    A("  s_mul_i32 s36, s30, 224*896       ; ks")
    A("  s_lshl_b32 s37, s38, 7")
    A("  s_add_u32 s36, s36, s37")
    srd(48, 20, 's36', 0 if 'zf' in exp else 223 * 896 + 128)
    A("  s_mul_i32 s75, s30, 7*512")
    A(f"  s_add_u32 s75, s75, {GU_OFF}")
    A("  s_add_u32 s74, s75, 28*1024")
    A("  s_mul_i32 s76, s30, 7")
    A("  s_lshr_b32 s76, s76, 1")
    A("  s_lshl_b32 s76, s76, 7            ; first gate tile flag")
    A("  s_mov_b32 s77, 9")
    A("  s_movk_i32 s78, 2048")
    A("  s_mov_b32 s45, 896")
    A("  s_mov_b32 s61, 2")
    A("  s_branch L_lt7a")
    A("L_f2:")
    stamp(4)
    FU = 172
    A("  v_lshlrev_b32 v14, 6, v11")
    A("  v_lshl_add_u32 v14, v2, 4, v14    ; (n&7)*64 + g*16")
    A("  v_and_b32 v13, 3, v0")
    A("  v_bfe_u32 v16, v0, 2, 1")
    A("  v_mad_u32_u24 v13, v16, 28, v13")
    A("  v_lshlrev_b32 v13, 7, v13")
    wait_done("L_f2poll", FD_OFF)
    for t in range(7):
        A(f"  buffer_load_dwordx4 v[{FX+4*t}:{FX+4*t+3}], v14, s[40:43], s75 offen offset:{t*512} sc1")
        A(f"  buffer_load_dwordx4 v[{FU+4*t}:{FU+4*t+3}], v14, s[40:43], s74 offen offset:{t*512} sc1")
    A("  s_waitcnt vmcnt(0)")
    for k in range(28):
        A(f"  v_lshlrev_b32 v16, 16, v{FX+k}")
        A(f"  v_and_b32 v17, 0xffff0000, v{FX+k}")
        A(f"  v_lshlrev_b32 v18, 16, v{FU+k}")
        A(f"  v_and_b32 v19, 0xffff0000, v{FU+k}")
        A("  v_pk_mul_f32 v[16:17], v[16:17], v[18:19]")
        A(f"  v_cvt_pk_bf16_f32 v{FX+k}, v16, v17")
    for r in range(16, 32, 2):
        A(f"  v_mov_b64 v[{r}:{r+1}], 0")
    A("  s_nop 0")
    A("  s_branch L_mm7")
    A("L_f2post:")
    for c in (0, 2):
        for r in range(4):
            A(f"  v_mov_b32_dpp v{16+4*c+r}, v{20+4*c+r} quad_perm:[0,1,2,3] bank_mask:0xc")
        for r in range(4):
            A(f"  v_bfi_b32 v{16+4*c+r}, s73, v15, v{16+4*c+r}")
        A(f"  buffer_store_dwordx4 v[{16+4*c}:{19+4*c}], v7, s[40:43], s72 offen offset:{c*64} sc1")
    stamp(5)
    A(f"  s_branch {'L_cpre0' if ns == 4 else 'L_jend'}")
    if ns == 4:
        A("L_cpre0:")
        A("  s_cmp_lt_u32 s62, 32")
        A("  s_cbranch_scc1 L_jend")
        A("  s_add_u32 s62, s62, 96")
        A("  v_mov_b32 v13, 0")
    A("L_cpre:")
    if ns < 4:
        A(f"  s_cmp_ge_u32 s62, {56*ns}              ; unit")
        A("  s_cbranch_scc1 L_jend")
    A("  s_and_b32 s36, s62, 7             ; b")
    srd(48, 22, None, 896)
    A("  s_mul_i32 s44, s36, 896")
    A(f"  buffer_load_dwordx4 v[32:35], v6, s[56:59], s44 offen {xflag}")
    A(f"  buffer_load_dwordx4 v[48:51], v6, s[48:51], 0 offen {xflag}")
    A(f"  v_and_b32 v7, {LT-1}, v0")
    A("  v_lshlrev_b32 v9, 3, v7")
    A("  v_and_b32 v10, 1, v2")
    A("  v_lshl_add_u32 v9, v10, 2, v9")
    A("  v_lshrrev_b32 v10, 1, v2")
    A("  v_lshl_add_u32 v9, v10, 1, v9     ; + sigma*2")
    A(f"  v_lshrrev_b32 v4, {lgL}, v0")
    A("  v_lshlrev_b32 v7, 4, v7")
    A("  v_lshl_add_u32 v7, v4, 8, v7      ; tile*256 + j*16")
    A(f"  v_and_b32 v10, {NL-1}, v0")
    A(f"  v_lshl_add_u32 v10, v10, {lgT}, v4")
    A(f"  v_lshlrev_b32 v10, {lgm}, v10        ; (m,l) record")
    A("  s_lshr_b32 s37, s62, 3            ; piece")
    A(f"  s_lshl_b32 s45, s37, {7 - (ns.bit_length()-1)}")
    A("  s_add_u32 s45, s44, s45")
    srd(52, 24, None, 7168)
    A(f"  s_lshr_b32 s46, s37, {ns.bit_length()-1}")
    A("  s_lshl3_add_u32 s46, s46, s36")
    A("  s_mul_i32 s46, s46, 10240")
    A(f"  s_and_b32 s37, s37, {ns-1}")
    A(f"  s_lshl_b32 s37, s37, {8 - (ns.bit_length()-1)}")
    A("  s_add_u32 s46, s46, s37")
    A(f"  s_add_u32 s46, s46, {YS_OFF}")
    A("  v_mov_b32 v14, 0")
    A("  v_mov_b32 v8, s60")
    A("  v_cmp_gt_u32 vcc, 56, v0")
    A("  s_waitcnt vmcnt(0)")
    A("  s_add_u32 s48, s46, 4096")
    A("  s_add_u32 s49, s46, 8192")
    A("  s_lshl_b32 s58, s36, 12")
    A(f"  s_add_u32 s58, s58, {MLS_OFF}")
    for k in range(4):
        A(f"  v_lshlrev_b32 v16, 16, v{32+k}")
        A(f"  v_and_b32 v17, 0xffff0000, v{32+k}")
        A(f"  v_lshlrev_b32 v18, 16, v{48+k}")
        A(f"  v_and_b32 v19, 0xffff0000, v{48+k}")
        A("  v_pk_mul_f32 v[16:17], v[16:17], v[18:19]")
        rnd2(16)
        A("  v_add_f32 v14, v14, v16")
        A("  v_add_f32 v14, v14, v17")
    A("  v_cndmask_b32 v14, 0, v14, vcc")
    for sh in (1, 2, 4, 8):
        A("  s_nop 1")
        A(f"  v_add_f32_dpp v14, v14, v14 row_ror:{sh}")
    for op in ("v_permlane16_swap_b32", "v_permlane32_swap_b32"):
        A("  v_mov_b32 v12, v14")
        A("  s_nop 1")
        A(f"  {op} v14, v12")
        A("  v_add_f32 v14, v14, v12")
    rnd1(14)
    A(f"  v_mul_f32 v14, 0x{f2u(-LOG2E):x}, v14")
    A("  v_exp_f32 v14, v14")
    A("  s_nop 0")
    A("  v_add_f32 v14, 1.0, v14")
    A("  v_rcp_f32 v14, v14")
    A("  s_nop 0")
    rnd1(14)
    A("  v_sub_f32 v12, 1.0, v14")
    rnd1(12)

    def xsum(a, nop=True):
        if nop: A("  s_nop 1")
        A(f"  v_permlane32_swap_b32 v{a}, v{a+1}")
        A(f"  v_permlane32_swap_b32 v{a+2}, v{a+3}")
        A(f"  v_add_f32 v{a}, v{a}, v{a+1}")
        A(f"  v_add_f32 v{a+2}, v{a+2}, v{a+3}")
        A("  s_nop 1")
        A(f"  v_permlane16_swap_b32 v{a}, v{a+2}")
        A(f"  v_add_f32 v{a}, v{a}, v{a+2}")
        for sh in (8, 4)[:ns.bit_length()-1]:
            A("  s_nop 1")
            A(f"  v_add_f32_dpp v{a}, v{a}, v{a} row_ror:{sh}")

    def tagchk(r, sd, t0, t1):
        A(f"  v_bitop3_b32 v{t0}, v{r}, v{r+1}, v8 bitop3:0x7e")
        A(f"  v_bitop3_b32 v{t1}, v{r+2}, v{r+3}, v8 bitop3:0x7e")
        A(f"  v_bitop3_b32 v{t0}, v{t0}, s73, v{t1} bitop3:0xc8")
        A(f"  v_cmp_ne_u32 {sd}, 0, v{t0}")
    A("L_cw:")
    A("  s_sleep 32")
    A(f"  ds_read_b32 v16, v13 offset:{TK}")
    A("  s_waitcnt lgkmcnt(0)")
    A("  v_readfirstlane_b32 s30, v16")
    A(f"  s_cmp_lt_u32 s30, {cwait}")
    A("  s_cbranch_scc1 L_cw")
    A("  s_mov_b32 s47, 0")
    if ns == 4:
        A("  v_mov_b64 v[32:33], 0")
        A("  v_mov_b64 v[34:35], 0")
        A("  s_mov_b32 exec_hi, 0")
    A("L_cd:")
    A("  buffer_load_dwordx4 v[32:35], v7, s[40:43], s49 offen sc1")
    if ns == 1: A("  buffer_load_dwordx4 v[36:39], v7, s[40:43], s49 offen offset:1024 sc1")
    A("  s_waitcnt vmcnt(0)")
    tagchk(32, "vcc", 16, 17)
    if ns == 1:
        tagchk(36, "s[64:65]", 18, 19)
        A("  s_or_b64 vcc, vcc, s[64:65]")
        A("  s_cbranch_scc0 L_cf2")
    else:
        A("  s_cbranch_vccz L_cf2")
    A(f"  s_sleep {fsleep}")
    A("  s_add_u32 s47, s47, 1")
    A(f"  s_cmp_lt_u32 s47, {0 if 'nj' in exp else BOUND}")
    A("  s_cbranch_scc1 L_cd")
    A("L_cf2:")
    if ns == 4: A("  s_mov_b32 exec_hi, -1")
    if ns == 1:
        A("  v_pk_add_f32 v[32:33], v[32:33], v[36:37]")
        A("  v_pk_add_f32 v[34:35], v[34:35], v[38:39]")
    xsum(32)
    rnd1(32)
    A("  v_mul_f32 v12, v12, v32")
    rnd1(12)
    CM = [f"s[{64+2*k}:{65+2*k}]" for k in range(4)] + [f"s[{4+2*k}:{5+2*k}]" for k in range(4)]
    for k in range(NL):
        A(f"  s_mov_b64 {CM[k]}, -1")
    A("  s_mov_b64 s[56:57], -1")
    for k in list(range(4*NL)) + [33, 35]:
        A(f"  v_not_b32 v{32+k}, v8")
    if ns > 1:
        A(f"  s_mov_b32 s50, {hex(((1 << LT) - 1) * 0x10001)}")
        A("  s_mov_b32 s51, s50")
    A("  s_mov_b32 s63, 1")
    stamp(5)
    def cload():
        for k in range(NL):
            A(f"  s_mov_b64 exec, {CM[k]}")
            o = k * 1024 * ns
            A(f"  buffer_load_dwordx4 v[{32+4*k}:{35+4*k}], v7, s[40:43], s{46 if o < 4096 else 48} offen offset:{o % 4096} sc1")
        A("  s_mov_b64 exec, -1")
    def mload():
        A("  s_mov_b64 exec, s[56:57]")
        A("  buffer_load_dwordx4 v[64:67], v10, s[40:43], s58 offen sc1")
    if cpre:
        A("L_cw2:")
        A("  s_sleep 8")
        A(f"  ds_read_b32 v16, v13 offset:{TK}")
        A("  s_waitcnt lgkmcnt(0)")
        A("  v_readfirstlane_b32 s30, v16")
        A(f"  s_cmp_lt_u32 s30, {cpre}")
        A("  s_cbranch_scc1 L_cw2")
        if cdel: A(f"  s_sleep {cdel}")
        if cpl:
            mload()
            cload()
    A("L_jend:")
    A("  v_mov_b32 v13, 0")
    A("  v_mov_b32 v17, s60")
    A("  v_mov_b32 v19, s60")
    A(f"  s_mov_b32 s47, {-CB}")
    if pb: A("  s_cmp_eq_u32 s63, 0")
    A("  s_barrier")
    stamp(6)
    A(f"  ds_read_b128 v[24:27], v13 offset:{ML}")
    A(f"  ds_read_b128 v[28:31], v13 offset:{ML+16}")
    if pb:
        A("  s_cbranch_scc1 L_npb")
        mload()
        cload()
        A("L_npb:")
    A("  s_waitcnt lgkmcnt(0)")
    def efac(vm, vn):
        A(f"  v_max3_f32 v{vm}, v24, v26, v28")
        A(f"  v_max_f32 v{vm}, v{vm}, v30")
        A(f"  v_mul_f32 v{vn}, 0x{f2u(-CSC):x}, v{vm}")
        for w in range(4):
            A(f"  v_fmamk_f32 v{24+2*w}, v{24+2*w}, 0x{f2u(CSC):x}, v{vn}")
        for w in range(4):
            A(f"  v_exp_f32 v{24+2*w}, v{24+2*w}")
    efac(16, 18)
    A("  v_mul_f32 v18, v24, v25")
    for w in range(1, 4):
        A(f"  v_fmac_f32 v18, v{24+2*w}, v{25+2*w}")
    A("  s_mov_b64 exec, 1")
    A("  buffer_store_dwordx4 v[16:19], v13, s[40:43], s79 offen sc1")
    A("  s_cmp_eq_u32 s63, 0")
    A("  s_cbranch_scc1 L_endw")
    A("  s_mov_b64 exec, -1")
    if pb == 2: A("  s_waitcnt vmcnt(1)")
    def again(lab, okl, ml):
        A(f"  s_bcnt1_i32_b64 s30, {CM[0]}")
        for k in range(1, NL):
            A(f"  s_bcnt1_i32_b64 s31, {CM[k]}")
            A("  s_add_u32 s30, s30, s31")
        A("  s_add_u32 s47, s47, 1")
        A(f"  s_cbranch_scc1 {okl}")
        A(f"  s_cmp_gt_u32 s30, {cthr}")
        A(f"  s_cbranch_scc1 {lab}s")
        if ml and mlr > 1:
            A(f"  s_and_b32 s31, s47, {mlr-1}")
            A("  s_cselect_b64 exec, 0, s[56:57]")
            A("  buffer_load_dwordx4 v[64:67], v10, s[40:43], s58 offen sc1")
        elif ml: mload()
        cload()
        A(f"  s_waitcnt vmcnt({(NL+ml)*(cdep-1)})")
        A(f"  s_branch {lab}")
        A(f"{lab}s:")
        A(f"  s_cmp_le_u32 s30, {cthr2}")
        A(f"  s_cbranch_scc1 {lab}a")
        if csleep: A(f"  s_sleep {csleep}")
        A(f"{lab}a:")
        if ml: mload()
        cload()
        if cdb > 1:
            A(f"  s_waitcnt vmcnt({(NL+ml)*(cdb-1)})")
            A(f"  s_cbranch_scc1 {lab}")
        A("  s_waitcnt vmcnt(0)")
        A(f"  s_branch {lab}")
    A("L_c1:")
    A("  v_bitop3_b32 v76, v65, v67, v8 bitop3:0x7e")
    A("  v_cmp_ne_u32 s[56:57], 0, v76")
    for k in range(NL):
        tagchk(32 + 4 * k, CM[k], 76, 77)
    A("  s_cmp_eq_u64 s[56:57], 0")
    A("  s_cbranch_scc1 L_c1x")
    again("L_c1", "L_c1x", 1)
    A("L_c1x:")
    stamp(1)
    cload()
    A(f"  s_or_b32 s47, s47, {-CB}")
    A("  v_mov_b32_dpp v77, v66 quad_perm:[1,0,3,2]")
    A("  v_mov_b32_dpp v76, v64 quad_perm:[1,0,3,2]")
    A("  v_max_f32 v78, v64, v76")
    A(f"  v_mul_f32 v78, 0x{f2u(-CSC):x}, v78")
    A(f"  v_fmamk_f32 v79, v64, 0x{f2u(CSC):x}, v78")
    A(f"  v_fmamk_f32 v76, v76, 0x{f2u(CSC):x}, v78")
    A("  v_exp_f32 v79, v79")
    A("  v_exp_f32 v76, v76")
    A("  v_mul_f32 v78, v79, v66")
    A("  v_fmac_f32 v78, v76, v77")
    A("  v_rcp_f32 v78, v78")
    A("  s_nop 0")
    A("  v_mul_f32 v78, v78, v79")
    A("  s_nop 1")
    for k in range(NL):
        A(f"  v_mov_b32_dpp v{68+k}, v78 " + (f"row_newbcast:{k}" if ns == 1 else f"quad_perm:[{k},{k},{k},{k}]"))
    A("L_c2:")
    for k in range(NL):
        tagchk(32 + 4 * k, CM[k], 76, 77)
        d = 16 + 4 * (k & 1) if ns == 1 else 16
        f = 68 + (k & 6)
        for r in (0, 2):
            s = 32 + 4 * k + r
            if k < (2 if ns == 1 else 1):
                A(f"  v_pk_mul_f32 v[{d+r}:{d+r+1}], v[{s}:{s+1}], v[{f}:{f+1}] op_sel:[0,{k&1}] op_sel_hi:[1,{k&1}]")
            else:
                A(f"  v_pk_fma_f32 v[{d+r}:{d+r+1}], v[{s}:{s+1}], v[{f}:{f+1}], v[{d+r}:{d+r+1}] op_sel:[0,{k&1},0] op_sel_hi:[1,{k&1},1]")
        if k == 1: A(f"  s_or_b64 s[30:31], {CM[0]}, {CM[1]}")
        elif k > 1: A(f"  s_or_b64 s[30:31], s[30:31], {CM[k]}")
    A("  s_cbranch_scc1 L_cretry")
    A("L_cok:")
    stamp(2)
    if ns == 1:
        for r in (0, 2):
            A(f"  v_pk_add_f32 v[{16+r}:{17+r}], v[{16+r}:{17+r}], v[{20+r}:{21+r}]")
    xsum(16, ns == 1 or debug)
    rnd1(16)
    A("  v_mul_f32 v16, v14, v16")
    rnd1(16)
    A("  v_add_f32 v16, v16, v12")
    A("  v_cvt_pk_bf16_f32 v16, v16, v16")
    if ns > 1: A("  s_mov_b64 exec, s[50:51]")
    A(f"  buffer_store_short v16, v9, s[52:55], s45 offen {outf}".rstrip())
    stamp(7)
    A("  s_cmp_lg_u32 s62, 0")
    A("  s_cbranch_scc1 L_endw")
    A("  s_mov_b64 exec, 1")
    A(f"  buffer_store_dword v8, v6, s[40:43], 0 offen offset:{EP_OFF} sc1")
    A("L_endw:")
    end()
    A("L_cretry:")
    again("L_c2", "L_cok", 0)

    RB = 32
    vSa, vSb, vS, vT, vN0, vN1, vAl, vP, vPk, vL, vC, vNegC = range(224, 236)
    assert RB + 4 * depth <= 224
    vTk, vOne = 248, 250
    Q = 24
    A(".p2align 6")
    A("L_stream:")
    assert sorted(pm) == list(range(9, 21))
    if pm[1] == pm[0] + 1:
        A(f"  v_lshlrev_b32 v4, {pm[0]}, v2")
    else:
        A("  v_and_b32 v4, 1, v2")
        A(f"  v_lshlrev_b32 v4, {pm[0]}, v4")
        A("  v_lshrrev_b32 v8, 1, v2")
        A(f"  v_lshl_add_u32 v4, v8, {pm[1]}, v4")
    A("  v_lshl_add_u32 v4, v3, 4, v4      ; voffset")
    A("  s_lshl4_add_u32 s36, s32, s34     ; bh")
    A("  s_lshl_b32 s36, s36, 21")
    A(f"  s_mov_b32 s45, {2<<20}")
    A(f"  s_lshl_b32 s65, s33, {pm[3]}")
    for (sb, db) in xm:
        assert db in pm[3:4] + pm[5:]
        A(f"  s_bfe_u32 s64, s36, {hex(0x10000 | sb)}")
        A(f"  s_lshl_b32 s64, s64, {db}")
        A("  s_xor_b32 s65, s65, s64")
    GO = [0, 1 << pm[2], 1 << pm[4], (1 << pm[2]) + (1 << pm[4])]
    hi = sorted(set(o & ~0xfff for o in GO))
    SR = dict(zip(hi, ['s44', 's67', 's75', 's76']))
    def addr(t, sel=True):
        tp = pm[5:]
        runs = []
        for k in range(7):
            if runs and tp[k] == tp[k-1] + 1: runs[-1][1] += 1
            else: runs.append([k, 1])
        for n, (k, ln) in enumerate(runs):
            A(f"  s_bfe_u32 s64, {t}, {hex((ln << 16) | k)}")
            A(f"  s_lshl_b32 s64, s64, {tp[k]}")
            A(f"  s_xor_b32 s44, s64, {'s65' if n == 0 else 's44'}")
        for o in hi[1:]: A(f"  s_add_u32 {SR[o]}, s44, {o}")
        if sel:
            A(f"  s_bitcmp1_b32 {t}, 7")
            A("  s_cselect_b64 s[48:49], s[52:53], s[54:55]")
    A("  s_mov_b32 s66, s38")
    addr('s66', False)
    if 'st' in exp: stamp(7)
    A("  s_waitcnt lgkmcnt(0)")
    if 'st' in exp: stamp(5)
    srd(48, 6, 's36', 's45')

    def reg(slot, i): return RB + (slot * 8 + i) * 4
    def ld0(slot, i):
        r = reg(slot, i); o = GO[i >> 1]
        A(f"  buffer_load_dwordx4 v[{r}:{r+3}], v4, s[48:51], {SR[o & ~0xfff]} offen offset:{(o & 0xfff) + 256 * (i & 1)} {kflag}")
    if 'st' in exp: stamp(6)
    for s in range(ring):
        for i in range(8):
            if s * 8 + i == b1:
                A("  s_barrier")
                if 'k0' in exp: stamp(6)
            if rw is not None and (s * 8 + i) % rws == 0 and s * 8 + i >= rw + rws: A(f"  s_waitcnt vmcnt({rw})")
            ld0(s, i)
        if s < ring - 1:
            A("  s_add_u32 s66, s66, 4")
            addr('s66', False)
        if 'st' in exp and s == 0:
            if 'sw' in exp: A("  s_waitcnt vmcnt(7)")
            stamp(2)
    stamp(1)
    A("  s_mov_b64 s[54:55], s[48:49]")
    A("  s_add_u32 s52, s8, s36")
    A("  s_addc_u32 s53, s9, 0")
    A("  s_and_b32 s53, s53, 0xffff")
    srd(40, 28, hex(wsb << 20) if wsb else None, WS_N)
    A("  s_mul_i32 s30, s38, 8*10240")
    A("  s_add_u32 s72, s72, s30")
    A("  s_lshl_b32 s30, s38, 11")
    A(f"  s_add_u32 s30, s30, {SC}")
    A("  v_lshlrev_b32 v8, 4, v0")
    A("  v_add_u32 v8, s30, v8")
    A("  v_mov_b64 v[12:13], -1")
    A("  v_mov_b64 v[14:15], -1")
    A("  ds_write_b128 v8, v[12:15]")
    A("  ds_write_b128 v8, v[12:15] offset:1024")
    A("  s_lshl_b32 s79, s38, 6")
    A(f"  s_add_u32 s79, s79, {SC - 8192}")
    A("  v_and_b32 v8, 1, v0")
    A("  v_lshlrev_b32 v8, 4, v8")
    A("  v_mov_b32 v9, 0xffff")
    A("  v_lshlrev_b32 v1, v8, v9")
    A("  v_and_b32 v8, 2, v0")
    A("  v_cmp_eq_u32 vcc, 0, v8")
    A("  s_nop 1")
    A("  v_cndmask_b32 v1, 0, v1, vcc")
    A("  v_and_b32 v8, 1, v2")
    A(f"  v_mul_u32_u24 v6, {PP}, v8")
    A("  v_lshl_add_u32 v6, v3, 3, v6")
    A("  v_lshrrev_b32 v8, 1, v2")
    A("  v_lshl_add_u32 v6, v8, 2, v6            ; (g&1)*PP + j*8 + (g>>1)*4")
    A(f"  s_mul_i32 s30, s38, {PS}")
    A(f"  s_add_u32 s30, s30, {OP}")
    A("  v_add_u32 v6, s30, v6")
    A(f"  v_lshlrev_b32 v{vSa}, 4, v3                 ; j*16")
    A("  s_waitcnt lgkmcnt(0)")
    for r in range(8, 24, 2):
        A(f"  v_mov_b64 v[{r}:{r+1}], 0")
    A(f"  v_mov_b32 v{vL}, 0")
    A(f"  v_mov_b32 v{vN0}, 0x{f2u(1e30):x}")
    A(f"  v_mov_b32 v{vN1}, v{vN0}")
    A(f"  v_mov_b32 v{vC}, 0x{f2u(CSC):x}")
    A(f"  v_mov_b32 v{vNegC}, 0x{f2u(-CSC):x}")
    A("  s_mov_b32 s61, 0xff7fffff")
    A(f"  s_mov_b32 s46, {lring}")
    A(f"  s_movk_i32 s71, {tw}")
    if xfo is not None:
        A("  s_and_b32 s74, s2, 7")
        A(f"  s_bitcmp1_b32 {hex(om)}, s74")
        A(f"  s_cselect_b32 s74, {xfo}, {xf}")
    A(f"  v_mov_b32 v{vOne}, 1")
    A(f"  v_mov_b32 v{vOne+1}, 0")
    A("  s_lshl_b32 s30, s38, 3")
    A("  v_mov_b32 v2, s30                       ; w*8")
    tail_setup()
    if 'tl' in exp:
        A("  s_lshl_b32 s98, s38, 9")
        A(f"  s_add_u32 s98, s98, {LDS_SIZE}")
        A(f"  v_lshlrev_b32 v{vSb}, 3, v0")
        A(f"  v_add_u32 v{vSb}, s98, v{vSb}")
        A(f"  ds_write_b64 v{vSb}, v[8:9]")
    A("  s_barrier")
    stamp(3)
    if 'tl' in exp: A("  s_memrealtime s[96:97]")
    A(f"  ds_read_b128 v[{Q}:{Q+3}], v{vSa} offset:{QL}")
    A(f"  ds_read_b128 v[{Q+4}:{Q+7}], v{vSa} offset:{QL+256}")
    A(f"  ds_read_b32 v{vS}, v{vOne+1} offset:{TAG}")
    def ticket():
        A("  s_mov_b64 exec, 1")
        A(f"  ds_add_rtn_u64 v[{vTk}:{vTk+1}], v{vOne+1}, v[{vOne}:{vOne+1}] offset:{TK}")
        A("  s_mov_b64 exec, -1")
    ticket()
    A("  s_waitcnt lgkmcnt(0)")
    A(f"  v_readfirstlane_b32 s60, v{vS}")
    lr = lring
    def thr_(lab, LV):
        n = len(LV)
        for k in range(n, 0, -1):
            A(f"  s_cmp_ge_u32 s68, {k}")
            A(f"  s_cbranch_scc1 {lab}_{k}")
        for k in range(n):
            A(f"  s_waitcnt vmcnt({LV[k]})")
            A(f"{lab}_{k+1}:")
    def itst(ty):
        if debug and 'st' not in exp and 'tt' not in exp:
            for it, k in (((18-lr)//lr, 2), ((36-lr)//lr, 5), ((54-lr)//lr, 6)):
                A(f"  s_cmp_lg_u32 s47, {it}")
                A(f"  s_cbranch_scc1 L_ns{ty}{k}")
                stamp(k)
                A(f"L_ns{ty}{k}:")
            A("  s_add_u32 s47, s47, 1")
    def body(s, mode, ty, W):
        nOld, nNew = (vN1, vN0) if s % 2 == 0 else (vN0, vN1)
        sX = f"s{77+s}" if mode == 'loop' else 's79'
        lv = LV if ty == 'k' or LVv is None else LVv
        W = [W]
        def wt():
            A(f"  s_waitcnt vmcnt({W[0]})")
            if mode == 'drain': W[0] -= 2
        def ld(i):
            if mode != 'drain': ld0(s, i)
        if mode == 'loop':
            A(f"L_{ty}{s}:")
            if ty == 'k':
                A(f"  s_cmp_ge_u32 {sX}, {SC}")
                A(f"  s_cbranch_scc1 L_tr{s}")
            if s == 0: itst(ty)
        if ty == 'k': A(f"  v_and_or_b32 v{vAl}, v0, 60, {sX}")
        if mode != 'drain':
            A("  s_waitcnt lgkmcnt(0)")
            A(f"  v_readfirstlane_b32 s30, v{vTk}")
            A(f"  v_readfirstlane_b32 s31, v{vTk+1}")
        if ty == 'v':
            A(f"  v_cmp_ne_u16 vcc, 0, v{vS}")
            A(f"  s_cbranch_vccnz L_rt{s}")
        if 'tl' in exp:
            A("  s_waitcnt lgkmcnt(0)")
            A(f"  v_mov_b32 v{vSa}, s96")
            A(f"  v_mov_b32 v{vSb}, s98")
            A(f"  ds_write_b32 v{vSb}, v{vSa}")
            A("  s_add_u32 s98, s98, 4")
        if mode == 'loop' and s == 0 and ty == 'v':
            A("  s_cmp_ge_u32 s30, s71")
            A("  s_cbranch_scc1 L_wld")
            A("L_wldx:")
        if ty == 'k':
            A(f"  v_mov_b32 v{vSa}, 0")
            A(f"  v_mov_b32 v{vSb}, 0")
        if mode == 'loop':
            A("  s_lshr_b32 s70, s31, 16")
            A("  s_and_b32 s31, s31, 0xffff")
            A("  s_cmp_lt_u32 s30, s70")
            A("  s_cselect_b32 s68, 1, 0")
            if xf2 is not None: A(f"  s_cselect_b32 s64, {xf}, {xf2}")
            if len(LV) == 4:
                A("  s_sub_u32 s69, s70, s30")
                A(f"  s_sub_u32 s69, s69, {d3+1}")
                A("  s_cmp_lt_u32 s69, 64")
                A("  s_addc_u32 s68, s68, 0")
            if len(LV) >= 3:
                A(f"  s_add_u32 s70, s70, {d2}")
                A("  s_cmp_lt_u32 s30, s70")
                A("  s_addc_u32 s68, s68, 0")
            A(f"  s_add_u32 s69, s30, {'s74' if xfo is not None else xf if xf2 is None else 's64'}")
            A("  s_cmp_ge_u32 s69, s31")
            A(f"  s_cselect_b32 s68, {len(LV)}, s68")
            if debug:
                A(f"  s_cmp_lt_u32 s68, 2")
                A("  s_cselect_b32 s69, 1, 0")
                A("  s_add_u32 s101, s101, s69")
            A("  s_cmp_lt_u32 s30, s31")
            A(f"  s_cbranch_scc0 L_fin{ty}{s}")
        if mode != 'drain':
            addr('s30', ty == 'k')
            A(f"  s_lshl_b32 s{77+s}, s30, 6")
            A(f"  s_add_u32 s{77+s}, s{77+s}, {SC - 8192}")
            ticket()
        if mode == 'loop': A(f"L_go{ty}{s}:")
        if ty == 'k':
            for hf in range(2):
                if mode == 'loop': thr_(f"L_t{ty}{s}{hf}", lv)
                for gi, acc in ((0, vSa), (1, vSb)):
                    i0 = 4 * hf + 2 * gi
                    wt()
                    if 'tl' in exp and i0 == 6: A("  s_memrealtime s[96:97]")
                    for i in range(2):
                        for e in range(4 if 'nd' not in exp else 1):
                            A(f"  v_dot2c_f32_bf16 v{acc}, v{reg(s,i0+i)+e}, v{Q + i*4 + e}")
                    ld(i0); ld(i0 + 1)
                if mode == 'drain': A("  s_nop 1")
                d = vT if hf else vS
                A(f"  v_add_f32_dpp v{d}, v{vSa}, v{vSa} row_ror:8 bank_mask:0x3")
                A(f"  v_add_f32_dpp v{d}, v{vSb}, v{vSb} row_ror:8 bank_mask:0xc")
                if hf == 0:
                    A(f"  v_mov_b32 v{vSa}, 0")
                    A(f"  v_mov_b32 v{vSb}, 0")
                    A(f"  v_add_f32_dpp v{vS}, v{vS}, v{vS} row_half_mirror bank_mask:0x5")
            A("  s_nop 1")
            A(f"  v_add_f32_dpp v{vS}, v{vT}, v{vT} row_half_mirror bank_mask:0xa")
            A("  s_nop 1")
            A(f"  v_add_f32_dpp v{vS}, v{vS}, v{vS} quad_perm:[1,0,3,2]")
            A("  s_nop 1")
            A(f"  v_add_f32_dpp v{vS}, v{vS}, v{vS} quad_perm:[2,3,0,1]")
            A(f"  v_cvt_pk_bf16_f32 v{vS}, v{vOne+1}, v{vS}")
            A(f"  ds_write_b32 v{vAl}, v{vS} offset:{8192 + (0 if mode == 'loop' else 256 * s)}")
        else:
            A(f"  v_max_f32_dpp v{vT}, v{vS}, v{vS} row_ror:8")
            A("  s_nop 1")
            A(f"  v_max_f32_dpp v{vT}, v{vT}, v{vT} row_ror:4")
            A(f"  v_max_f32 v{vT}, s61, v{vT}")
            A("  s_nop 1")
            A(f"  v_max_f32_dpp v{vT}, v{vT}, v{vT} row_bcast:15 row_mask:0xa")
            A("  s_nop 1")
            A(f"  v_max_f32_dpp v{vT}, v{vT}, v{vT} row_bcast:31 row_mask:0xc")
            A("  s_nop 0")
            A(f"  v_readlane_b32 s61, v{vT}, 63")
            A(f"  v_and_or_b32 v{vT}, v0, 60, s{77+(s+1)%lr}")
            A("  s_nop 0")
            A(f"  v_mul_f32 v{nNew}, s61, v{vNegC}")
            A(f"  v_sub_f32 v{vAl}, v{nNew}, v{nOld}")
            A(f"  v_fma_f32 v{vP}, v{vS}, v{vC}, v{nNew}")
            A(f"  ds_read_b32 v{vS}, v{vT}")
            A(f"  v_exp_f32 v{vAl}, v{vAl}")
            A(f"  v_exp_f32 v{vP}, v{vP}")
            A(f"  v_mul_f32 v16, v{vAl}, v16")
            A(f"  v_cvt_pk_bf16_f32 v{vPk}, v{vP}, v{vP}")
            A(f"  v_mul_f32 v17, v{vAl}, v17")
            A(f"  v_mul_f32 v20, v{vAl}, v20")
            AO = (8, 12, 24, 28)
            for gi, bc in enumerate((0, 8, 4, 12)):
                for r in range(4):
                    A(f"  v_and_b32_dpp v{AO[gi]+r}, v{vPk}, v1 row_newbcast:{bc} bank_mask:0x{1<<r:x}")
                if gi == 0:
                    A(f"  v_mul_f32 v21, v{vAl}, v21")
                    A(f"  v_fma_f32 v{vL}, v{vL}, v{vAl}, v{vP}")
            for gi in range(4):
                if gi % 2 == 0: thr_(f"L_t{ty}{s}{gi}", lv)
                wt()
                if 'tl' in exp and gi == 3: A("  s_memrealtime s[96:97]")
                a = AO[gi]
                A(f"  v_mfma_f32_16x16x32_bf16 v[16:19], v[{a}:{a+3}], v[{reg(s,2*gi)}:{reg(s,2*gi)+3}], v[16:19]")
                A(f"  v_mfma_f32_16x16x32_bf16 v[20:23], v[{a}:{a+3}], v[{reg(s,2*gi+1)}:{reg(s,2*gi+1)+3}], v[20:23]")
                ld(2 * gi); ld(2 * gi + 1)
        if mode == 'loop':
            A("  s_cmp_eq_u32 s46, 0")
            A("  s_cbranch_scc1 L_sdone")
    for s in range(ring):
        body(s, 'first' if s < lr else 'drain', 'k', depth - 2 - 8 * max(0, s - lr))
    for ty in 'kv':
        for s in range(lr):
            body(s, 'loop', ty, lr * 8 - 2)
        A(f"  s_branch L_{ty}0")
    for s in range(lr):
        for ty in 'kv':
            A(f"L_fin{ty}{s}:")
            for o in hi: A(f"  s_mov_b32 {SR[o]}, s45")
            A(f"  s_mov_b32 s68, {len(LV)}")
            A("  s_sub_u32 s46, s46, 1")
            A(f"  s_branch L_go{ty}{s}")
        A(f"L_tr{s}:")
        for r in range(Q, Q + 8, 2): A(f"  v_mov_b64 v[{r}:{r+1}], 0")
        A(f"L_rt{s}:")
        A(f"  v_and_or_b32 v{vT}, v0, 60, s{77+s}")
        A(f"  ds_read_b32 v{vS}, v{vT}")
        A(f"  s_branch L_v{s}")
    A("L_wld:")
    for j in range(1, wsp):
        A(f"  s_cmp_eq_u32 s71, {tw + j*wst}")
        A(f"  s_cbranch_scc1 L_wld{j}")
    A("L_wld0:")
    A(f"  ds_read_b32 v{vSa}, v{vOne+1} offset:{WF}")
    A("  s_waitcnt lgkmcnt(0)")
    A(f"  v_readfirstlane_b32 s71, v{vSa}")
    A("  s_cmp_lt_u32 s71, 2")
    A("  s_cbranch_scc1 L_wld0")
    for j in range(wsp):
        if j: A(f"L_wld{j}:")
        A("  s_lshl_b32 s71, s38, 15")
        A(f"  s_add_u32 s71, s71, {STG}")
        traddr(vSb, vT, 's71')
        for t in range(8*j//wsp, 8*(j+1)//wsp):
            for c in range(4):
                for hi in range(2):
                    r = woreg(t, c, hi)
                    A(f"  ds_read_b64_tr_b16 v[{r}:{r+1}], v{vSb} offset:{t*4096+hi*512+c*32}")
        if j < wsp - 1: A(f"  s_movk_i32 s71, {tw + (j+1)*wst}")
        else: A("  s_mov_b32 s71, -1")
        A("  s_branch L_wldx")
    if wsp > 1:
        A("L_wfix:")
        A(f"  ds_read_b32 v{vSa}, v{vOne+1} offset:{WF}")
        A("  s_waitcnt lgkmcnt(0)")
        A(f"  v_readfirstlane_b32 s71, v{vSa}")
        A("  s_cmp_lt_u32 s71, 2")
        A("  s_cbranch_scc1 L_wfix")
        A("  s_lshl_b32 s71, s38, 15")
        A(f"  s_add_u32 s71, s71, {STG}")
        traddr(vSb, vT, 's71')
        for t in range(8):
            for c in range(4):
                for hi in range(2):
                    r = woreg(t, c, hi)
                    A(f"  ds_read_b64_tr_b16 v[{r}:{r+1}], v{vSb} offset:{t*4096+hi*512+c*32}")
        A("  s_mov_b32 s71, -1")
        A("  s_waitcnt lgkmcnt(0)")
    A("L_sdone:")
    if wsp > 1:
        A("  s_cmp_lg_u32 s71, -1")
        A("  s_cbranch_scc1 L_wfix")
    stamp(4)
    if tprio: A(f"  s_setprio {tprio}")
    A("  s_waitcnt lgkmcnt(0)")
    A(f"  v_add_f32_dpp v{vL}, v{vL}, v{vL} row_ror:8")
    A(f"  v_mov_b32 v{vS}, s61")
    A("  s_nop 0")
    A(f"  v_add_f32_dpp v{vL}, v{vL}, v{vL} row_ror:4")
    A("  s_nop 1")
    A(f"  v_add_f32_dpp v{vL}, v{vL}, v{vL} row_bcast:15 row_mask:0xa")
    A("  v_cvt_pk_bf16_f32 v16, v16, v17")
    A("  v_cvt_pk_bf16_f32 v20, v20, v21")
    A(f"  v_add_f32_dpp v{vT}, v{vL}, v{vL} row_bcast:31 row_mask:0xc")
    assert vT == vS + 1 and vS % 2 == 0
    A("  ds_write2_b32 v6, v16, v20 offset0:0 offset1:32")
    A("  s_lshl_b64 exec, exec, 63")
    A(f"  ds_write_b64 v2, v[{vS}:{vT}] offset:{ML}")
    A("  s_mov_b64 exec, -1")
    A("  s_waitcnt lgkmcnt(0)")
    if 'tt' in exp: stamp(1)
    A("L_tail:")
    A("  s_barrier")
    if 'tt' in exp: stamp(2)
    def ard(u): A(f"  ds_read_b128 v[{8+4*u}:{11+4*u}], v3 offset:{OP+64*u}")
    ard(0); ard(1)
    A(f"  ds_read_b128 v[24:27], v255 offset:{ML}")
    A(f"  ds_read_b128 v[28:31], v255 offset:{ML+16}")
    ard(2); ard(3)
    def sm(u, c):
        d = DR[c]; w = WO + 32 * u + 8 * c
        A(f"  v_smfmac_f32_16x16x64_bf16 v[{d}:{d+3}], v[{8+4*u}:{11+4*u}], v[{w}:{w+7}], v5")
    A("  v_mov_b32 v6, s60")
    A(f"  s_movk_i32 s73, {hex((1 << tb) - 1)}")
    A("  s_waitcnt lgkmcnt(5)")
    if 'tt' in exp: stamp(5)
    for c in range(4): sm(0, c)
    A("  s_waitcnt lgkmcnt(4)")
    for c in range(4): sm(1, c)
    A("  s_waitcnt lgkmcnt(1)")
    n0 = len(L)
    efac(1, 2)
    ev = L[n0:]; del L[n0:]
    for c in range(4):
        sm(2, c)
        for x in ev[2*c:2*c+2]: A(x)
    A("  s_waitcnt lgkmcnt(0)")
    for k, c in enumerate((0, 2, 1, 3)):
        sm(3, c)
        if k < 3: A(ev[8+k])
    if tp2 is not None:
        A(f"  s_setprio {tp2}")
        A("  s_nop 0")
    else: A("  s_nop 1")
    if 'tt' in exp: stamp(6)
    for c in (0, 2, 1, 3):
        y = 1 + (c & 1)
        for r in range(4):
            op = "v_mul_f32_dpp" if r == 0 else "v_fmac_f32_dpp"
            A(f"  {op} v{y}, v{DR[c]+r}, v{24+2*r} quad_perm:[0,1,2,3] row_mask:0x{3 if c < 2 else 12:x}")
    A("  s_nop 1")
    A("  v_permlane16_swap_b32 v1, v2")
    A("  v_add_f32 v1, v1, v2")
    A("  v_bfi_b32 v1, s73, v6, v1")
    A("  buffer_store_dword v1, v7, s[40:43], s72 offen sc1")
    if 'st' not in exp: stamp(7)
    end()

    if debug:
        A("L_dbg:")
        A("  s_mov_b64 exec, -1")
        A("  s_memrealtime s[96:97]")
        A("  s_getreg_b32 s98, hwreg(HW_REG_XCC_ID)")
        A("  s_getreg_b32 s99, hwreg(HW_REG_HW_ID)")
        if 'pc' in exp:
            A("  s_getpc_b64 s[30:31]")
            A("  s_mov_b32 s99, s30")
            A("  s_lshl_b32 s31, s31, 4")
            A("  s_and_b32 s98, s98, 15")
            A("  s_or_b32 s98, s98, s31")
        A("  s_waitcnt lgkmcnt(0) vmcnt(0)")
        A("  s_mov_b64 exec, 1")
        A("  s_mul_i32 s30, s2, 8")
        A("  s_add_u32 s30, s30, s100")
        A("  s_lshl_b32 s30, s30, 6")
        A(f"  s_add_u32 s30, s30, {DBG_OFF}")
        A("  v_mov_b32 v0, s30")
        for k in range(8):
            A(f"  v_mov_b32 v{2+k}, s{SB+2*k}")
        A("  v_mov_b32 v10, s96")
        A("  v_mov_b32 v11, s98")
        A(f"  s_and_b32 s47, s47, {CB-1}")
        A("  v_mov_b32 v12, s47")
        A("  v_mov_b32 v13, s101")
        A("  v_mov_b32 v14, s99")
        A("  global_store_dwordx4 v0, v[2:5], s[28:29]")
        A("  global_store_dwordx4 v0, v[6:9], s[28:29] offset:16")
        A("  global_store_dwordx4 v0, v[10:13], s[28:29] offset:32")
        A("  global_store_dword v0, v14, s[28:29] offset:48")
        if 'tl' in exp:
            A("  s_mov_b64 exec, -1")
            A("  s_sub_u32 s30, s100, 2")
            A("  s_cmp_ge_u32 s30, 4")
            A("  s_cbranch_scc1 L_end")
            A("  v_mbcnt_lo_u32_b32 v0, -1, 0")
            A("  v_mbcnt_hi_u32_b32 v0, -1, v0")
            A("  v_lshlrev_b32 v0, 3, v0")
            A("  s_lshl_b32 s31, s30, 9")
            A(f"  s_add_u32 s31, s31, {LDS_SIZE}")
            A("  v_add_u32 v1, s31, v0")
            A("  ds_read_b64 v[2:3], v1")
            A("  s_lshl2_add_u32 s30, s2, s30")
            A("  s_lshl_b32 s30, s30, 9")
            A(f"  s_add_u32 s30, s30, {DBG_OFF + (1 << 20)}")
            A("  v_add_u32 v0, s30, v0")
            A("  s_waitcnt lgkmcnt(0)")
            A("  global_store_dwordx2 v0, v[2:3], s[28:29]")
        if 'h2' in exp:
            from h2 import h2
            h2(A, jobmap())
        A("  s_endpgm")
    A("L_end:")
    A("  s_endpgm")
    A('.section .rodata,"a"')
    A(".p2align 6")
    A(f".amdhsa_kernel {NAME}")
    A("  .amdhsa_next_free_vgpr 256")
    A("  .amdhsa_next_free_sgpr 102")
    A("  .amdhsa_accum_offset 256")
    A("  .amdhsa_group_segment_fixed_size 0")
    A("  .amdhsa_kernarg_size 104")
    A("  .amdhsa_user_sgpr_count 2")
    A("  .amdhsa_user_sgpr_kernarg_segment_ptr 1")
    A("  .amdhsa_system_sgpr_workgroup_id_x 1")
    A(".end_amdhsa_kernel")
    s = "\n".join(x for x in L if x is not None) + "\n"
    if debug:
        s = s.replace("  v_lshrrev_b32 v2, 4, v0           ; g\n", "  v_lshrrev_b32 v2, 4, v0           ; g\n  s_mov_b32 s100, s3\n", 1)
    return s


if __name__ == "__main__":
    import argparse, json
    ap = argparse.ArgumentParser()
    ap.add_argument('-o', default='gated_mix__mha_block_cached__swiglu_ffn__decode.s')
    ap.add_argument('--cfg', default='{}')
    a = ap.parse_args()
    s = gen(**json.loads(a.cfg))
    open(a.o, 'w').write(s)
    sys.path.insert(0, 'work')
    from lint import lint
    e = lint(s)
    for x in e: print(f"HAZARD L{x[0]}->L{x[1]} need {x[2]} have {x[3]}: {x[4]}  ==>  {x[5]}")
    print("hazards:", len(e))
```
